```python
import torch

def _softmax(x, axis=-1):
    return torch.softmax(x, dim=axis)

def _gelu(x):
    return torch.nn.functional.gelu(x, approximate='tanh')

def _silu(x):
    return torch.nn.functional.silu(x)

def _sigmoid(x):
    return torch.sigmoid(x)

def _layernorm(x, axis=-1, eps=1e-05):
    m = x.mean(dim=axis, keepdim=True)
    v = x.var(dim=axis, keepdim=True, unbiased=False)
    return (x - m) / torch.sqrt(v + eps)

def _scatter_add(tgt, idx, src, axis=0):
    return tgt.clone().index_add_(axis, idx, src)

def _segment_sum(src, seg, n):
    out = torch.zeros((n,) + src.shape[1:], dtype=src.dtype)
    return out.index_add_(0, seg, src)

def _pad(x, pw):
    flat = tuple((v for pair in reversed(pw) for v in pair))
    return torch.nn.functional.pad(x, flat)
kernel_name = 'adaLN_cond__mha_block_cached__moe_arch_mod__prompt'

def setup_inputs():

    _w = lambda a: (lambda t: t.to(torch.bfloat16) if t.is_floating_point() else t)(torch.as_tensor(a))

    def _A_setup():
        B, Sq, D = (1, 2048, 1024)
        H, Sk, Dh = (32, 2048, 128)
        return {'x': _w((lambda *s: torch.randn(*s, dtype=torch.bfloat16) * 0.1)(B, Sq, D)), 'k_cache': _w((lambda *s: torch.randn(*s, dtype=torch.bfloat16) * 0.8)(B, H, Sk, Dh)), 'v_cache': _w((lambda *s: torch.randn(*s, dtype=torch.bfloat16) * 0.8)(B, H, Sk, Dh)), 'wq': _w((lambda *s: torch.randn(*s, dtype=torch.bfloat16) * 0.8)(D, H * Dh) * D ** (-0.5)), 'wo': _w((lambda *s: torch.randn(*s, dtype=torch.bfloat16) * 0.8)(H * Dh, D) * (H * Dh) ** (-0.5))}
    _A_in = _A_setup()

    def _B_setup():
        B, S, D, F, C = (1, 2048, 1024, 3584, 2)
        return {'x': _w((lambda *s: torch.randn(*s, dtype=torch.bfloat16) * 0.1)(B, S, D)), 'w_r': _w((lambda *s: torch.randn(*s, dtype=torch.bfloat16) * 3.2)(D)), 'w_gate': _w((lambda *s: torch.randn(*s, dtype=torch.bfloat16) * 0.2)(D, F)), 'w_up': _w((lambda *s: torch.randn(*s, dtype=torch.bfloat16) * 0.2)(D, F)), 'w_down': _w((lambda *s: torch.randn(*s, dtype=torch.bfloat16) * 0.2)(F, D))}
    _B_in = _B_setup()
    return {'A_x': _A_in['x'], 'A_k_cache': _A_in['k_cache'], 'A_v_cache': _A_in['v_cache'], 'A_wq': _A_in['wq'], 'A_wo': _A_in['wo'], 'B_x': _B_in['x'], 'B_w_r': _B_in['w_r'], 'B_w_gate': _B_in['w_gate'], 'B_w_up': _B_in['w_up'], 'B_w_down': _B_in['w_down'], 'c': _w((lambda *s: torch.randn(*s, dtype=torch.bfloat16) * 0.2)(1, 1024) * 8.0), 'w_mod': _w((lambda *s: torch.randn(*s, dtype=torch.bfloat16) * 0.2)(1024, 6 * 1024) * 1024 ** (-0.5) * 8.0)}

def reference(A_x, A_k_cache, A_v_cache, A_wq, A_wo, B_x, B_w_r, B_w_gate, B_w_up, B_w_down, c, w_mod):

    def _A_ref(x, k_cache, v_cache, wq, wo):
        B, Sq, D = x.shape
        H, Dh = (32, 128)
        q = (lambda x, *d: x.permute(*d))((x @ wq).reshape(B, Sq, H, Dh), 0, 2, 1, 3)
        scores = torch.einsum('bhqd,bhkd->bhqk', q, k_cache) * Dh ** (-0.5)
        p = _softmax(scores, axis=-1)
        o = torch.einsum('bhqk,bhkd->bhqd', p, v_cache)
        return (lambda x, *d: x.permute(*d))(o, 0, 2, 1, 3).reshape(B, Sq, H * Dh) @ wo

    def _B_ref(x, w_r, w_gate, w_up, w_down):
        B, S, D = x.shape
        C = 2
        r = x @ w_r
        idx = torch.argsort(-r, axis=-1)[:, :C]
        idx_e = (lambda x, n, axis: torch.repeat_interleave(x, n, dim=axis))(idx.reshape(B, C, 1), D, axis=2)
        x_sel = (lambda x, i, axis: torch.take_along_dim(x, i, dim=axis))(x, idx_e, axis=1)
        g = _silu(x_sel @ w_gate)
        u = x_sel @ w_up
        y = g * u @ w_down
        r_sel = _sigmoid((lambda x, i, axis: torch.take_along_dim(x, i, dim=axis))(r, idx, axis=1))
        y = y * r_sel.reshape(B, C, 1)
        b_off = (torch.arange(B) * S).reshape(B, 1)
        flat_idx = (idx + b_off).reshape(B * C)
        zero = (x * 0.0).reshape(B * S, D)
        upd = _scatter_add(zero, flat_idx, y.reshape(B * C, D), axis=0)
        return x + upd.reshape(B, S, D)
    x = A_x
    mod = (_silu(c) @ w_mod).reshape(c.shape[0], 6, 1, -1)
    sa, ca, ga, sb, cb, gb = (mod[:, 0].clone(), mod[:, 1].clone(), mod[:, 2].clone(), mod[:, 3].clone(), mod[:, 4].clone(), mod[:, 5].clone())
    h = _layernorm(x, axis=-1) * (1 + ca) + sa
    x = x + ga * _A_ref(h, A_k_cache, A_v_cache, A_wq, A_wo)
    h = _layernorm(x, axis=-1) * (1 + cb) + sb
    x = x + gb * _B_ref(h, B_w_r, B_w_gate, B_w_up, B_w_down)
    return x
```

```python
class Asm:
    def __init__(self):
        self.lines = []
        self.kernels = []
        self.launches = []
        self.uid = 0
    def __call__(self, s):
        for l in s.split("\n"):
            l = l.strip()
            if l: self.lines.append(l)
    def label(self, n): self.lines.append(n + ":")
    def newlabel(self, p="L"):
        self.uid += 1
        return f"{p}_{self.uid}"
    def kernel(self, name, vgpr, accum, sgpr=102):
        self.kernels.append((name, vgpr, accum, sgpr))
        self.lines += [f".globl {name}", ".p2align 8", f".type {name},@function", f"{name}:"]
    def launch(self, name, grid, block, lds):
        self.launches.append(f"; @launch kernel={name} grid=({grid},1,1) block=({block},1,1) lds={lds}")
    def text(self, header=""):
        out = [header] if header else []
        out += self.launches
        out += ['.amdgcn_target "amdgcn-amd-amdhsa--gfx950"', ".text"]
        for l in self.lines:
            out.append(l if (l.endswith(":") or l.startswith(".")) else "    " + l)
        out += ['.section .rodata,"a"']
        for (name, vgpr, accum, sgpr) in self.kernels:
            out += [".p2align 6", f".amdhsa_kernel {name}",
                    f"  .amdhsa_next_free_vgpr {vgpr}", f"  .amdhsa_next_free_sgpr {sgpr}",
                    f"  .amdhsa_accum_offset {accum}", "  .amdhsa_group_segment_fixed_size 0",
                    "  .amdhsa_kernarg_size 120", "  .amdhsa_user_sgpr_count 2",
                    "  .amdhsa_user_sgpr_kernarg_segment_ptr 1", "  .amdhsa_system_sgpr_workgroup_id_x 1",
                    "  .amdhsa_float_denorm_mode_32 3",
                    ".end_amdhsa_kernel"]
        return "\n".join(out) + "\n"
```

```python
from layout import *
import struct, math
def f2u(x): return struct.unpack('<I', struct.pack('<f', x))[0]
MF = "v_mfma_f32_16x16x32_bf16"
G = 4160; SLOT = 4 * G; WBLK = 8448; BIAS = 4096

class Cfg:
    nsync = 1; stamps = False; ones = True; chain = True; dma = True; sched = 0
    def __init__(self, **kw):
        self.__dict__.update(kw)
        self.L = 3 if self.nsync == 1 else 4
        self.RING = 4 if self.nsync == 1 else 6
        self.WBASE = (4 if self.nsync == 1 else 5) * SLOT
        self.LDS = self.WBASE + 8 * WBLK

vKa, vVa, vKa2, vVa2, vWa, vD0, vD1, vD2, vD3, vW0, vW1, vH = 1, 2, 3, 4, 5, 6, 7, 8, 9, 10, 11, 12
vT = 13
OB = 16
SB = 144
PB = 208
NB = 240
QB = 0; KF = 64; VF = 96; LB = 128; ONES = 144
WF = 0
HF = 128
sK, sV, sW, sH, sO = 8, 12, 16, 20, 24
sWv, sMkv, sMw, sOffKV, sOffW, sOffH, sCnt, sC = 28, 29, 30, 31, 32, 33, 34, 36
sT0 = 40

def v(b, n=1): return f"v{b}" if n == 1 else f"v[{b}:{b+n-1}]"
def a(b, n=1): return f"a{b}" if n == 1 else f"a[{b}:{b+n-1}]"
def s(b, n=1): return f"s{b}" if n == 1 else f"s[{b}:{b+n-1}]"
def O(db, qb): return OB + (db * 4 + qb) * 4
def S(par, t, qb): return SB + par * 32 + (qb * 2 + t) * 4
def P(par, qb): return PB + par * 16 + qb * 4
def Q(qb, ks): return QB + (qb * 4 + ks) * 4

def weave(mf, gaps, pre=()):
    out = list(pre)
    for i, m in enumerate(mf):
        out.append(m); out += gaps.get(i, [])
    for k in sorted(gaps):
        if k >= len(mf): out += gaps[k]
    return out

class Attn:
    def __init__(self, cfg): self.c = cfg; self.nstamp = 0; self.wstride = 8192
    def stamp(self):
        if not self.c.stamps: return []
        r = sT0 + 4 * self.nstamp; self.nstamp += 1
        return [f"s_memtime {s(r,2)}", f"s_memrealtime {s(r+2,2)}", "s_waitcnt lgkmcnt(0)"]
    def kaddr(self, rs):
        return (vKa, rs * SLOT) if rs < 3 or self.c.RING == 4 else (vKa2, (rs - 3) * SLOT)
    def vaddr(self, rs):
        return (vVa, rs * SLOT) if rs < 3 or self.c.RING == 4 else (vVa2, (rs - 3) * SLOT)
    def kreads(self, slot, dst=KF):
        r, o = self.kaddr((slot - self.c.L) % self.c.RING)
        return [f"ds_read_b128 {a(dst + (t*4+ks)*4, 4)}, {v(r)} offset:{o + 512*t + 64*ks}" for t in range(2) for ks in range(4)]
    def vreads(self, slot, dst=VF):
        r, o = self.vaddr((slot - self.c.L) % self.c.RING)
        return [f"ds_read_b64_tr_b16 {a(dst + db*4 + 2*tt, 2)}, {v(r)} offset:{o + 512*tt + 32*db}" for db in range(8) for tt in range(2)]
    def dma_setup(self, slot):
        return [f"s_add_u32 m0, {s(sMkv)}, {(slot % self.c.RING) * SLOT}", f"s_add_u32 {s(sOffKV)}, {s(sOffKV)}, 8192"]
    def dmas(self, k=True, vv=True):
        o = []
        if k: o += [f"buffer_load_dwordx4 {v(vD0)}, {s(sK,4)}, {s(sOffKV)} offen lds",
                    f"buffer_load_dwordx4 {v(vD1)}, {s(sK,4)}, {s(sOffKV)} offen offset:1056 lds"]
        if vv: o += [f"buffer_load_dwordx4 {v(vD2)}, {s(sV,4)}, {s(sOffKV)} offen offset:2080 lds",
                     f"buffer_load_dwordx4 {v(vD3)}, {s(sV,4)}, {s(sOffKV)} offen offset:3136 lds"]
        return o
    def qk(self, par, kf=KF, c0=None):
        out = []
        order = [(t, qb, ks) for t in range(2) for qb in range(4) for ks in range(4)] if self.c.chain else \
                [(t, qb, ks) for t in range(2) for ks in range(4) for qb in range(4)]
        for t, qb, ks in order:
            d = v(S(par, t, qb), 4)
            c = d if ks else ("0" if c0 is None else v(c0 + 4 * qb, 4))
            out.append(f"{MF} {d}, {a(kf + (t*4+ks)*4, 4)}, {a(Q(qb, ks), 4)}, {c}")
        return out
    def pv(self, par, vf=VF):
        out = []
        if self.c.ones:
            for qb in range(4): out.append(f"{MF} {a(LB+4*qb,4)}, {a(ONES,4)}, {v(P(par,qb),4)}, {a(LB+4*qb,4)}")
        for db in range(8):
            for qb in range(4):
                out.append(f"{MF} {v(O(db,qb),4)}, {a(vf+db*4,4)}, {v(P(par,qb),4)}, {v(O(db,qb),4)}")
        return out
    def exps(self, par): return [f"v_exp_f32 {v(SB+par*32+e)}, {v(SB+par*32+e)}" for e in range(32)]
    def cvts(self, par): return [f"v_cvt_pk_bf16_f32 {v(PB+par*16+n)}, {v(SB+par*32+2*n)}, {v(SB+par*32+2*n+1)}" for n in range(16)]
    def adds(self, par): return [f"v_add_f32 {v(NB+(e>>3)*4+(e&3))}, {v(SB+par*32+e)}, {v(NB+(e>>3)*4+(e&3))}" for e in range(32)]
    def sync(self, slot, force=False, vm=8):
        if force or slot % self.c.nsync == 0: return [f"s_waitcnt vmcnt({vm}) lgkmcnt(0)", "s_barrier"]
        return ["s_waitcnt lgkmcnt(0)"]
    def slot(self, b, tail=()):
        c = self.c
        mf = self.qk((b + 1) & 1) + self.pv((b - 1) & 1)
        ex = self.exps(b & 1); cv = self.cvts(b & 1); vr = self.vreads(b); kr = self.kreads(b)
        dm = self.dmas() if c.dma else ["s_nop 0"] * 4
        g = {i: [] for i in range(len(mf))}
        if c.ones:
            for e in range(32): g[2 * e].append(ex[e])
            K = lambda k: g[2 * k + 1]
            K(0).extend(self.dma_setup(b))
            for k in range(1, 9): K(k).extend(vr[2*k-2:2*k])
            K(9).append(dm[0]); K(10).extend(cv[0:2]); K(11).extend(cv[2:4]); K(12).extend(cv[4:6])
            K(13).append(dm[1]); K(14).append(cv[6]); K(15).append("s_waitcnt lgkmcnt(0)")
            for k in range(16, 20): K(k).extend(kr[2*(k-16):2*(k-16)+2])
            K(20).append(dm[2]); K(21).extend(cv[7:9]); K(22).extend(cv[9:11]); K(24).append(dm[3])
            K(25).append(cv[11]); K(27).append(cv[12]); K(29).append(cv[13]); K(30).append(cv[14]); K(31).append(cv[15])
            g[64].extend(tail[:-1]); g[67].extend(tail[-1:])
        else:
            ad = self.adds(b & 1)
            for e in range(32): g[2 * e].append(ex[e]); g[2 * e + 1].append(ad[e])
            K = lambda k: g[2 * k + 1]
            K(0).extend(self.dma_setup(b))
            for k in range(1, 13): K(k).append(vr[k-1])
            for k in range(4): g[4 + 4*k].append(vr[12 + k])
            K(13).append(dm[0]); K(14).append(cv[0]); K(15).append("s_waitcnt lgkmcnt(0)")
            for k in range(16, 24): K(k).append(kr[k-16])
            for n in range(1, 8): g[20 + 4*n].append(cv[n])
            for n in range(8, 16): K(16 + n).append(cv[n])
            g[26].append(dm[1]); g[42].append(dm[2]); g[54].append(dm[3])
            g[63].extend(tail)
        return weave(mf, g, self.sync(b))
    def wreads(self, n):
        o = (n % 8) * WBLK; d = WF + (n & 1) * 32
        return [f"ds_read_b64_tr_b16 {a(d + db*4 + 2*tt, 2)}, {v(vWa)} offset:{o + 512*tt + 64*(db>>1) + 8*(db&1)}" for db in range(8) for tt in range(2)]
    def wdma(self, n):
        return [f"s_add_u32 m0, {s(sMw)}, {(n % 8) * WBLK}", f"s_add_u32 {s(sOffW)}, {s(sOffW)}, {32*self.wstride}",
                f"buffer_load_dwordx4 {v(vW0)}, {s(sW,4)}, {s(sOffW)} offen lds",
                f"buffer_load_dwordx4 {v(vW1)}, {s(sW,4)}, {s(sOffW)} offen offset:1056 lds"]
    def hload(self, n):
        return [f"s_add_u32 {s(sOffH)}, {s(sOffH)}, 4096"] + \
               [f"buffer_load_dwordx4 {a(HF + (n % 8)*16 + qb*4, 4)}, {v(vH)}, {s(sH,4)}, {s(sOffH)} offen offset:{1024*qb}" for qb in range(4)]
    def qstep(self, n, tail=()):
        mf = [f"{MF} {v(O(db,qb),4)}, {a(WF+(n&1)*32+db*4,4)}, {a(HF+(n%8)*16+qb*4,4)}, {v(O(db,qb),4)}" for db in range(8) for qb in range(4)]
        wr = self.wreads(n + 1); wd = self.wdma(n + 8); hl = self.hload(n + 7)
        g = {i: [] for i in range(32)}
        g[0] += wd[0:2]; g[1] += [hl[0]]
        for k in range(8): g[2 + 2*k] += wr[2*k:2*k+2]
        for k in range(4): g[3 + 4*k] += [hl[1 + k]]
        g[19] += [wd[2]]; g[23] += [wd[3]]
        g[28] += list(tail[:-1]); g[31] += list(tail[-1:])
        return weave(mf, g, ["s_waitcnt vmcnt(36) lgkmcnt(0)", "s_barrier"])
    def kv_init(self):
        c = self.c; o = []
        for b in range(-2 - c.L, -1):
            o += self.dma_setup(b) + self.dmas(True, b + c.L - 1 >= 0)
        return o
    def pack(self, table, scale):
        o = []
        for sidx in range(4):
            for qb in range(4):
                for t in range(2):
                    b = O(2*sidx + t, qb)
                    for u in range(2):
                        if scale: o.append(f"v_pk_mul_f32 {v(b+2*u,2)}, {v(b+2*u,2)}, {scale(qb)} op_sel_hi:[1,0]")
                for t in range(2):
                    b = O(2*sidx + t, qb)
                    for u in range(2):
                        o.append(f"v_cvt_pk_bf16_f32 {v(SB+(sidx*4+qb)*4+2*t+u)}, {v(b+2*u)}, {v(b+2*u+1)}")
                o += table(sidx, qb, SB + (sidx*4+qb)*4)
        return o
    def build(self, name):
        c = self.c; L = c.L
        pro = f"""
        s_cmp_ge_u32 s2, 256
        s_cbranch_scc1 {name}_end
        s_load_dwordx4 s[4:7], s[0:1], {KA_K}
        s_load_dwordx2 s[16:17], s[0:1], {KA_WQ}
        s_load_dwordx2 s[20:21], s[0:1], {KA_WS}
        v_lshrrev_b32 v13, 6, v0
        v_and_b32 v0, 63, v0
        v_readfirstlane_b32 {s(sWv)}, v13
        s_and_b32 s3, s2, 7
        s_lshl_b32 s3, s3, 2
        s_bfe_u32 s35, s2, 0x20003
        s_add_u32 s3, s3, s35
        s_lshr_b32 s35, s2, 5
        s_lshl_b32 s35, s35, 2
        s_add_u32 s35, s35, {s(sWv)}
        s_mul_i32 {s(sMkv)}, {s(sWv)}, {G}
        s_mul_i32 {s(sMw)}, {s(sWv)}, 2112
        s_add_u32 {s(sMw)}, {s(sMw)}, {c.WBASE}
        v_lshrrev_b32 v13, 4, v0
        v_and_b32 v14, 15, v0
        v_lshlrev_b32 v15, 4, v14
        s_lshr_b32 s36, {s(sWv)}, 1
        s_lshl_b32 s36, s36, 16
        s_and_b32 s37, {s(sWv)}, 1
        s_lshl_b32 s37, s37, 14
        s_add_u32 s36, s36, s37
        v_and_b32 v14, 1, v13
        v_lshl_add_u32 {v(vW0)}, v14, 17, v15
        v_lshrrev_b32 v14, 1, v13
        v_lshl_add_u32 {v(vW0)}, v14, 15, {v(vW0)}
        v_add_u32 {v(vW0)}, s36, {v(vW0)}
        v_add_u32 {v(vW1)}, {8192-1056}, {v(vW0)}
        v_lshlrev_b32 {v(vH)}, 4, v0
        s_waitcnt lgkmcnt(0)
        s_lshl_b32 s36, s3, 8
        s_add_u32 s16, s16, s36
        s_addc_u32 s17, s17, 0
        s_mov_b32 s18, {1023*8192+256}
        s_mov_b32 s19, 0x20000
        s_mov_b32 s24, s20
        s_mov_b32 s25, s21
        s_lshl_b32 s36, s35, 17
        s_add_u32 s36, s36, {WS_H}
        s_add_u32 s20, s20, s36
        s_addc_u32 s21, s21, 0
        s_mov_b32 s22, {32*4096}
        s_mov_b32 s23, 0x20000
        s_mov_b32 {s(sOffW)}, {(-32*8192) & 0xffffffff}
        s_mov_b32 {s(sOffH)}, {(-4096) & 0xffffffff}
        """.split("\n")
        pro = [l.strip() for l in pro if l.strip()]
        pro[2:2] = self.stamp()
        pro += self.wdma(0)
        for n in range(-7, 0): pro += self.hload(n + 7) + self.wdma(n + 8)
        pro2 = f"""
        s_lshl_b32 s36, s35, 19
        s_lshl_b32 s37, s3, 14
        s_add_u32 s36, s36, s37
        s_add_u32 s36, s36, {WS_O}
        s_add_u32 s24, s24, s36
        s_addc_u32 s25, s25, 0
        s_mov_b32 s26, 16384
        s_mov_b32 s27, 0x20000
        s_lshl_b32 s36, s3, 19
        s_add_u32 s8, s4, s36
        s_addc_u32 s9, s5, 0
        s_sub_u32 s8, s8, {BIAS}
        s_subb_u32 s9, s9, 0
        s_mov_b32 s10, {BIAS + 524288}
        s_mov_b32 s11, 0x20000
        s_add_u32 s12, s6, s36
        s_addc_u32 s13, s7, 0
        s_sub_u32 s12, s12, {BIAS + 3*8192}
        s_subb_u32 s13, s13, 0
        s_mov_b32 s14, {BIAS + 3*8192 + 524288}
        s_mov_b32 s15, 0x20000
        s_mov_b32 {s(sOffKV)}, {(-8192) & 0xffffffff}
        s_lshl_b32 s36, {s(sWv)}, 9
        s_add_u32 s36, s36, {BIAS}
        v_lshl_add_u32 {v(vD0)}, v13, 11, v15
        v_add_u32 {v(vD0)}, s36, {v(vD0)}
        v_add_u32 {v(vD1)}, {(256-1056) & 0xffffffff}, {v(vD0)}
        v_add_u32 {v(vD2)}, {(-2080) & 0xffffffff}, {v(vD0)}
        v_add_u32 {v(vD3)}, {(256-3136) & 0xffffffff}, {v(vD0)}
        v_bfe_u32 v15, v0, 1, 2
        v_mul_u32_u24 {v(vKa)}, {G}, v15
        v_and_b32 v15, 1, v0
        v_mul_u32_u24 v15, 1056, v15
        v_add_u32 {v(vKa)}, {v(vKa)}, v15
        v_bfe_u32 v15, v0, 3, 1
        v_lshl_add_u32 {v(vKa)}, v15, 8, {v(vKa)}
        v_lshl_add_u32 {v(vKa)}, v13, 4, {v(vKa)}
        v_bfe_u32 v15, v0, 3, 2
        v_mul_u32_u24 {v(vVa)}, {G}, v15
        v_bfe_u32 v15, v0, 2, 1
        v_mul_u32_u24 v15, 1056, v15
        v_add_u32 {v(vVa)}, {v(vVa)}, v15
        v_lshrrev_b32 v15, 5, v0
        v_lshl_add_u32 {v(vVa)}, v15, 8, {v(vVa)}
        v_and_b32 v14, 3, v0
        v_lshl_add_u32 {v(vVa)}, v14, 3, {v(vVa)}
        v_add_u32 {v(vVa)}, 2080, {v(vVa)}
        v_add_u32 {v(vKa2)}, {3*SLOT}, {v(vKa)}
        v_add_u32 {v(vVa2)}, {3*SLOT}, {v(vVa)}
        v_bfe_u32 v13, v0, 2, 3
        v_mul_u32_u24 {v(vWa)}, 1056, v13
        v_lshl_add_u32 {v(vWa)}, v15, 8, {v(vWa)}
        v_lshl_add_u32 {v(vWa)}, v14, 4, {v(vWa)}
        v_add_u32 {v(vWa)}, {c.WBASE}, {v(vWa)}
        s_mov_b32 {s(sCnt)}, 0
        """.split("\n")
        pro += [l.strip() for l in pro2 if l.strip()]
        pro += [f"v_mov_b64 {v(OB+2*i,2)}, 0" for i in range(64)]
        pro += ["s_waitcnt vmcnt(42)", "s_barrier"] + self.wreads(0)
        pro += self.stamp()
        qhead = [f"{name}_q:", f"s_cmp_lg_u32 {s(sCnt)}, 3", f"s_cbranch_scc1 {name}_q2"]
        kvi = self.kv_init()
        qbody = [f"{name}_q2:"]
        for n in range(8):
            qbody += self.qstep(n, [f"s_add_u32 {s(sCnt)}, {s(sCnt)}, 1", f"s_cmp_lt_u32 {s(sCnt)}, 4", f"s_cbranch_scc1 {name}_q"] if n == 7 else ())
        mid = self.stamp()
        mid += [f"s_mov_b32 {s(sC)}, {f2u(math.log2(math.e) / math.sqrt(128.0))}", "s_waitcnt vmcnt(0) lgkmcnt(0)", "s_barrier"]
        mid += self.kreads(-2, VF) + self.kreads(-1, KF)
        mid += self.pack(lambda ks, qb, r: [f"v_accvgpr_write_b32 {a(Q(qb, ks) + i)}, {v(r + i)}" for i in range(4)], lambda qb: s(sC, 2))
        mid += [f"v_mov_b32 v13, 0x3f803f80"] + [f"v_accvgpr_write_b32 {a(ONES+i)}, v13" for i in range(4)]
        mid += [f"v_accvgpr_write_b32 {a(LB+i)}, 0" for i in range(16)] if c.ones else [f"v_mov_b32 {v(NB+i)}, 0" for i in range(16)]
        mid += self.stamp()
        g = {i: [f"v_mov_b64 {v(OB+4*i,2)}, 0", f"v_mov_b64 {v(OB+4*i+2,2)}, 0"] for i in range(32)}
        g[0] += self.dma_setup(-1)
        for k, d in enumerate(self.dmas()): g[2 + 6 * k].append(d)
        mid += weave(self.qk(0, VF), g, self.sync(-1, True))
        ex = self.exps(0); cv = self.cvts(0); kr = self.kreads(0); ad = self.adds(0)
        g = {i: [] for i in range(33)}
        g[0] += self.dma_setup(0)
        for k, d in enumerate(self.dmas()): g[1 + k].append(d)
        assert c.chain
        for e in range(32): g[min(32, 4 + e)].append(ex[e])
        for k in range(4): g[16 + 2*k].append(kr[k])
        g[32] = kr[4:8] + g[32] + ["s_nop 0"] + cv + ([] if c.ones else ad)
        mid += weave(self.qk(1), g, self.sync(0, True))
        mid += [f"s_mov_b32 {s(sCnt)}, 0", f"s_branch {name}_entry"]
        U = c.RING; trips = (62 - 2) // U + 1
        body1 = [f"{name}_loop:"]
        for b in range(3, U + 1): body1 += self.slot(b)
        body2 = [f"{name}_entry:"] + self.slot(U + 1) + self.slot(U + 2, [f"s_add_u32 {s(sCnt)}, {s(sCnt)}, 1", f"s_cmp_lt_u32 {s(sCnt)}, {trips}", f"s_cbranch_scc1 {name}_loop"])
        epi = ["s_waitcnt vmcnt(0) lgkmcnt(0)", "s_barrier"] + self.vreads(63)
        ex = self.exps(1); cv = self.cvts(1); ad = self.adds(1); vr = self.vreads(64, KF)
        epi += ex[:12] + ["s_waitcnt lgkmcnt(0)"]
        mf = self.pv(0)
        g = {i: [] for i in range(len(mf))}
        for e in range(12, 32): g[e - 12].append(ex[e])
        for k in range(8): g[20 + k] += [vr[2*k], vr[2*k+1]]
        for n in range(16): g[min(len(mf) - 1, 20 + n)].append(cv[n])
        if not c.ones: g[len(mf) - 1] += ad
        epi += weave(mf, g) + ["s_waitcnt lgkmcnt(0)", "s_nop 0"] + self.pv(1, KF)
        epi += self.stamp()
        fin = []
        if c.ones:
            fin += [f"v_accvgpr_read_b32 {v(NB+2*qb)}, {a(LB+4*qb)}" for qb in range(4)]
        else:
            for qb in range(4):
                fin += [f"v_add_f32 {v(NB+4*qb)}, {v(NB+4*qb)}, {v(NB+4*qb+1)}", f"v_add_f32 {v(NB+4*qb+2)}, {v(NB+4*qb+2)}, {v(NB+4*qb+3)}",
                        f"v_add_f32 v13, {v(NB+4*qb)}, {v(NB+4*qb+2)}", "v_mov_b32 v14, v13", "s_nop 1", "v_permlane32_swap_b32 v13, v14", "v_add_f32 v13, v13, v14",
                        "v_mov_b32 v14, v13", "s_nop 1", "v_permlane16_swap_b32 v13, v14", f"v_add_f32 {v(NB+2*qb)}, v13, v14"]
        fin += [f"v_rcp_f32 {v(NB+2*qb)}, {v(NB+2*qb)}" for qb in range(4)] + ["s_nop 3"]
        def st(sidx, qb, r):
            o = []
            if qb == 0: o.append(f"s_mov_b32 s36, {4096*sidx}")
            return o + [f"buffer_store_dwordx4 {v(r,4)}, {v(vH)}, {s(sO,4)}, s36 offen offset:{1024*qb}"]
        fin += self.pack(st, lambda qb: v(NB + 2*qb, 2))
        if c.stamps:
            fin += ["s_waitcnt vmcnt(0)"] + self.stamp()
            fin += ["s_memrealtime s[38:39]", f"s_load_dwordx2 s[4:5], s[0:1], {KA_WS}", "s_waitcnt lgkmcnt(0)",
                    f"s_add_u32 s4, s4, {WS_TIME}", "s_addc_u32 s5, s5, 0", "s_lshl_b32 s36, s2, 2", f"s_add_u32 s36, s36, {s(sWv)}", "s_lshl_b32 s36, s36, 6",
                    "v_mov_b32 v13, s36"]
            for i in range(self.nstamp):
                fin += [f"v_mov_b32 v14, s{sT0+4*i}", f"global_store_dword v13, v14, s[4:5] offset:{4*i}",
                        f"v_mov_b32 v15, s{sT0+4*i+2}", f"global_store_dword v13, v15, s[4:5] offset:{32+4*i}"]
        fin += [f"{name}_end:", "s_endpgm"]
        text = pro + qhead + kvi + qbody + mid + body1 + body2 + epi + fin
        trace = pro + qhead + qbody + qhead + kvi + qbody + mid + body2 + body1 + body2 + body1 + body2 + epi + fin
        return text, trace

    def build_oproj(self, name, st):
        from small import L, srd
        self.wstride = 2048
        pro = L(f"""
        s_cmp_ge_u32 s2, 256
        s_cbranch_scc1 {name}_end""") + st.start() + L(f"""
        s_load_dwordx2 s[16:17], s[0:1], {KA_WO}
        s_load_dwordx2 s[4:5], s[0:1], {KA_WS}
        v_lshrrev_b32 v13, 6, v0
        v_and_b32 v0, 63, v0
        v_readfirstlane_b32 {s(sWv)}, v13
        s_bfe_u32 s3, s2, 0x20001
        s_and_b32 s35, s2, 1
        s_lshl_b32 s35, s35, 2
        s_lshr_b32 s36, s2, 6
        s_add_u32 s35, s35, s36
        s_lshl_b32 s35, s35, 2
        s_add_u32 s35, s35, {s(sWv)}
        s_bfe_u32 s38, s2, 0x30003
        s_mul_i32 {s(sMw)}, {s(sWv)}, 2112
        v_lshrrev_b32 v13, 4, v0
        v_and_b32 v14, 15, v0
        v_lshlrev_b32 v15, 4, v14
        s_lshl_b32 s36, {s(sWv)}, 12
        v_lshl_add_u32 {v(vW0)}, v13, 14, v15
        v_add_u32 {v(vW0)}, s36, {v(vW0)}
        v_add_u32 {v(vW1)}, {2048-1056}, {v(vW0)}
        v_lshlrev_b32 {v(vH)}, 4, v0
        s_lshl_b32 s36, s3, 21
        s_lshl_b32 s37, s38, 8
        s_add_u32 s36, s36, s37
        s_lshl_b32 s37, s35, 19
        s_lshl_b32 s39, s3, 17
        s_add_u32 s37, s37, s39
        s_add_u32 s37, s37, {WS_O}
        s_waitcnt lgkmcnt(0)""") + srd(16, 16, "s36", 1023*2048+256) + srd(20, 4, "s37", 32*4096) + L(f"""
        s_mov_b32 {s(sOffW)}, {(-32*2048) & 0xffffffff}
        s_mov_b32 {s(sOffH)}, {(-4096) & 0xffffffff}""")
        pro += self.wdma(0)
        for n in range(-7, 0): pro += self.hload(n + 7) + self.wdma(n + 8)
        pro += L(f"""
        s_lshl_b32 s36, s3, 22
        s_lshl_b32 s37, s35, 17
        s_add_u32 s36, s36, s37
        s_lshl_b32 s37, s38, 8
        s_add_u32 s36, s36, s37
        s_add_u32 s36, s36, {WS_PART}""") + srd(24, 4, "s36", 63*2048+256) + L(f"""
        v_lshlrev_b32 {v(vD0)}, 11, v14
        v_lshl_add_u32 {v(vD0)}, v13, 4, {v(vD0)}
        v_lshrrev_b32 v15, 5, v0
        v_and_b32 v14, 3, v0
        v_bfe_u32 v13, v0, 2, 3
        v_mul_u32_u24 {v(vWa)}, 1056, v13
        v_lshl_add_u32 {v(vWa)}, v15, 8, {v(vWa)}
        v_lshl_add_u32 {v(vWa)}, v14, 4, {v(vWa)}
        s_mov_b32 {s(sCnt)}, 0""")
        pro += [f"v_mov_b64 {v(OB+2*i,2)}, 0" for i in range(64)]
        pro += ["s_waitcnt vmcnt(42)", "s_barrier"] + self.wreads(0)
        qbody = [f"{name}_q:"]
        for n in range(8):
            qbody += self.qstep(n, [f"s_add_u32 {s(sCnt)}, {s(sCnt)}, 1", f"s_cmp_lt_u32 {s(sCnt)}, 4", f"s_cbranch_scc1 {name}_q"] if n == 7 else ())
        fin = [f"s_mov_b32 s{40+qb}, {qb*16*2048}" for qb in range(4)] + ["s_nop 3"]
        fin += self.pack(lambda sidx, qb, r: [f"buffer_store_dwordx4 {v(r,4)}, {v(vD0)}, {s(sO,4)}, s{40+qb} offen offset:{64*sidx}"], None)
        fin += st.end() + [f"{name}_end:", "s_endpgm"]
        return pro + qbody + fin, pro + qbody + qbody + fin

if __name__ == "__main__":
    import sys
    from asmlib import Asm
    from check import check
    kw = dict(eval(sys.argv[2])) if len(sys.argv) > 2 else {}
    cfg = Cfg(**kw)
    A = Asm(); A.kernel("attn_kernel", 512, 256)
    text, trace = Attn(cfg).build("attn")
    check(trace, "attn")
    A("\n".join(text)); A.launch("attn_kernel", 256, 256, cfg.LDS)
    open(sys.argv[1], "w").write(A.text())
```

```python
import re
REG = re.compile(r'^(-|\|)?(abs\()?([vas])(\d+|\[(\d+):(\d+)\])\)?\|?$')
def regs(tok):
    tok = tok.strip()
    if tok in ('vcc',): return {('s', 'vcc')}
    if tok in ('vcc_lo', 'vcc_hi'): return {('s', 'vcc')}
    if tok in ('exec', 'exec_lo', 'exec_hi'): return {('s', 'exec')}
    if tok == 'm0': return {('s', 'm0')}
    m = REG.match(tok)
    if not m: return set()
    k = m.group(3)
    if m.group(5) is not None:
        return {(k, i) for i in range(int(m.group(5)), int(m.group(6)) + 1)}
    return {(k, int(m.group(4)))}
TRANS = ('v_exp_', 'v_log_', 'v_rcp_', 'v_rsq_', 'v_sqrt_', 'v_sin_', 'v_cos_')
class I:
    def __init__(self, text):
        self.text = text
        t = text.split(';')[0].strip()
        p = t.split(None, 1)
        self.op = op = p[0]
        rest = p[1] if len(p) > 1 else ''
        ops = [x.strip() for x in rest.split(',')]
        mods = []
        if ops:
            q = ops[-1].split()
            if q:
                ops[-1] = q[0]; mods = q[1:]
        cl = []
        for o in ops:
            q = o.split()
            if q: cl.append(q[0]); mods += q[1:]
        self.ops = ops = cl; self.mods = mods
        R = [regs(o) for o in ops]
        U = lambda l: set().union(*l) if l else set()
        self.defs = set(); self.uses = set(); self.srcC = set(); self.srcAB = set()
        self.kind = 'other'; self.passes = 0; self.ws = 1; self.stdata = set()
        self.dpp = ('_dpp' in op) or any(m.startswith(('row_', 'quad_perm', 'wave_')) for m in mods)
        if op.startswith('v_mfma'):
            self.kind = 'mfma'; self.defs = R[0]; self.srcAB = R[1] | R[2]; self.srcC = R[3]
            self.uses = self.srcAB | self.srcC
            self.passes = 8 if '32x32' in op else 4
        elif op.startswith('v_'):
            self.kind = 'valu'
            if op.startswith('v_permlane') and 'swap' in op:
                self.defs = R[0] | R[1]; self.uses = R[0] | R[1]
            elif '_co_' in op or op.startswith(('v_div_scale', 'v_mad_u64')):
                self.defs = R[0] | R[1]; self.uses = U(R[2:])
            elif op == 'v_nop': pass
            else:
                self.defs = R[0]; self.uses = U(R[1:])
                if op.startswith(('v_fmac', 'v_dot2c', 'v_pk_fmac', 'v_writelane')) or self.dpp: self.uses |= R[0]
                if op.startswith('v_cmpx'): self.defs |= {('s', 'exec')}
            self.trans = op.startswith(TRANS)
        elif op.startswith('ds_'):
            self.kind = 'ds'
            if op.startswith(('ds_read', 'ds_bpermute', 'ds_permute', 'ds_swizzle')) or '_rtn' in op:
                self.defs = R[0]; self.uses = U(R[1:])
            else: self.uses = U(R)
        elif op.startswith(('buffer_', 'global_')):
            self.kind = 'vmem'
            self.lds = ('lds' in mods) or ('_lds_' in op)
            if op in ('buffer_wbl2', 'buffer_inv'): pass
            elif self.lds: self.uses = U(R) | {('s', 'm0')}
            elif '_load' in op: self.defs = R[0]; self.uses = U(R[1:])
            elif 'atomic' in op and 'sc0' in mods:
                if op.startswith('buffer_'): self.defs = R[0]; self.uses = U(R)
                else: self.defs = R[0]; self.uses = U(R[1:])
            else:
                self.uses = U(R)
                if 'x4' in op or 'x3' in op:
                    self.stdata = R[0] if op.startswith('buffer_') else R[1]
        elif op.startswith('s_'):
            self.kind = 'salu'
            if op == 's_nop': self.ws = int(ops[0], 0) + 1
            elif op.startswith(('s_load', 's_memtime', 's_memrealtime', 's_buffer_load', 's_atomic')):
                self.kind = 'smem'; self.defs = R[0]; self.uses = U(R[1:])
            elif op.startswith(('s_cmp', 's_bitcmp')): self.uses = U(R)
            elif op.startswith(('s_waitcnt', 's_barrier', 's_branch', 's_cbranch', 's_endpgm', 's_setprio', 's_sleep')): pass
            elif 'saveexec' in op: self.defs = R[0] | {('s', 'exec')}; self.uses = U(R[1:]) | {('s', 'exec')}
            else:
                self.defs = R[0]; self.uses = U(R[1:])
                if op.startswith(('s_addk', 's_mulk')): self.uses |= R[0]
def check(lines, name='', verbose=True):
    ins = [I(l) for l in lines if l.strip() and not l.strip().endswith(':') and not l.strip().startswith(('.', ';'))]
    errs = []
    vm = []; lg = []
    for i, x in enumerate(ins):
        if x.op == 's_waitcnt':
            t = x.text
            m = re.search(r'vmcnt\((\d+)\)', t)
            if m:
                n = int(m.group(1)); vm = vm[len(vm) - n:] if n else []
                if n > 63: errs.append((i, 'vmcnt > 63'))
            m = re.search(r'lgkmcnt\((\d+)\)', t)
            if m:
                n = int(m.group(1))
                if n > 15: errs.append((i, 'lgkmcnt > 15'))
                if n and any(k == 'smem' for _, _, k in lg): errs.append((i, 'counted lgkmcnt with smem outstanding'))
                lg = lg[len(lg) - n:] if (n and n <= len(lg)) else ([] if n == 0 else lg)
        touched = x.defs | x.uses
        for q in (vm, lg):
            for d, j, k in q:
                ov = d & touched
                if ov and not (x.kind in ('vmem', 'ds') and q is (vm if x.kind == 'vmem' else lg) and not (d & x.uses)):
                    errs.append((i, f'touches pending load dst {sorted(ov)[:2]} of [{ins[j].text}]'))
        if x.kind == 'vmem' and x.op not in ('buffer_inv',): vm.append((x.defs, i, 'vmem'))
        if x.kind == 'ds': lg.append((x.defs, i, 'ds'))
        if x.kind == 'smem': lg.append((x.defs, i, 'smem'))
        dist = 0
        for j in range(i - 1, max(-1, i - 24), -1):
            p = ins[j]
            need = 0; why = ''
            def rq(n, w):
                nonlocal need, why
                if n > need: need, why = n, w
            vdef = {r for r in p.defs if r[0] in 'va'}; sdef = {r for r in p.defs if r[0] == 's'}
            if p.kind == 'valu':
                if x.kind == 'mfma' and vdef & x.uses: rq(2, 'valu->mfma')
                if x.kind == 'valu':
                    if p.trans and not x.trans and vdef & x.uses: rq(1, 'trans->valu')
                    if x.op.startswith(('v_readfirstlane', 'v_readlane')) and vdef & x.uses: rq(1, 'valu->readlane')
                    if x.op.startswith('v_permlane') and vdef & x.uses: rq(2, 'valu->permlane')
                    if x.dpp and vdef & x.uses: rq(2, 'valu->dpp')
                    if sdef & x.uses: rq(4 if x.op.startswith(('v_readlane', 'v_writelane')) else 2, 'valu sgpr->valu')
                    if ('s', 'vcc') in sdef and x.op.startswith(('v_cndmask', 'v_addc', 'v_subb')): rq(2, 'vcc->valu')
                    if ('s', 'vcc') in sdef and x.op.startswith('v_div_fmas'): rq(4, 'vcc->div_fmas')
                    if ('s', 'exec') in sdef and (x.dpp): rq(5, 'exec->dpp')
                if p.trans and x.kind in ('vmem', 'ds') and vdef & x.uses: rq(1, 'trans->mem')
                if x.kind == 'vmem' and sdef & x.uses: rq(5, 'valu sgpr->vmem')
                if x.kind == 'mfma' and ('s', 'exec') in sdef: rq(4, 'exec->mfma')
            if p.kind == 'mfma':
                big = {4: 8, 8: 12}[p.passes]
                if x.kind == 'mfma':
                    if p.defs & x.srcAB: rq(big, 'mfma D->AB')
                    if p.defs & x.srcC and not (p.defs == x.srcC and p.passes == x.passes): rq(big - 2, 'mfma D->C overlap')
                    if p.defs & x.defs and not (p.defs == x.srcC): rq(big - 2, 'mfma WAW')
                elif x.kind in ('valu', 'vmem', 'ds'):
                    if p.defs & (x.uses | x.defs): rq(big, 'mfma D->' + x.kind)
                    if x.kind == 'valu' and p.srcC & x.defs: rq({4: 3, 8: 7}[p.passes], 'mfma C WAR')
            if p.kind == 'salu' and ('s', 'm0') in p.defs and x.kind == 'vmem' and x.lds: rq(1, 'm0->lds dma')
            if p.stdata and x.kind in ('valu', 'mfma') and p.stdata & x.defs: rq(2, 'store data WAR')
            if need > dist: errs.append((i, f'{why}: need {need} have {dist} after [{p.text}]'))
            dist += p.ws
            if dist >= 20: break
    if verbose:
        for i, e in errs[:40]: print(f'HAZARD {name} #{i} [{ins[i].text}]: {e}')
        print(f'check {name}: {len(ins)} instrs, {len(errs)} problems')
    return errs
```

```python
WS_H    = 0
WS_O    = 4 << 20
WS_PART = 20 << 20
WS_H2   = 36 << 20
WS_MOD  = 40 << 20
WS_KEY  = WS_MOD + 16384
WS_SEL  = WS_KEY + 8192
WS_YP   = 41 << 20
WS_TIME = 48 << 20
WS_SIZE = 256 << 20
KA_X, KA_K, KA_V, KA_WQ, KA_WO, KA_BX, KA_WR, KA_WG, KA_WU, KA_WD, KA_C, KA_WMOD, KA_OUT, KA_DBG, KA_WS = [8 * i for i in range(15)]
```

```python
from layout import *
import struct, math
def f2u(x): return struct.unpack('<I', struct.pack('<f', x))[0]
def v(b, n=1): return f"v{b}" if n == 1 else f"v[{b}:{b+n-1}]"
def a(b, n=1): return f"a{b}" if n == 1 else f"a[{b}:{b+n-1}]"
def s(b, n=1): return f"s{b}" if n == 1 else f"s[{b}:{b+n-1}]"
def L(t): return [l.strip() for l in t.split("\n") if l.strip()]
DPP = "row_mask:0xf bank_mask:0xf"
LOG2E = f2u(math.log2(math.e))
def srd(d, base, off, size):
    if off == 0: o = [f"s_mov_b32 s{d}, s{base}", f"s_mov_b32 s{d+1}, s{base+1}"] if d != base else []
    else: o = [f"s_add_u32 s{d}, s{base}, {off}", f"s_addc_u32 s{d+1}, s{base+1}, 0"]
    return o + [f"s_mov_b32 s{d+2}, {size}", f"s_mov_b32 s{d+3}, 0x20000"]
def unpack(dst, src, n):
    o = []
    for i in range(n):
        o += [f"v_lshlrev_b32 {v(dst+2*i)}, 16, {v(src+i)}", f"v_and_b32 {v(dst+2*i+1)}, 0xffff0000, {v(src+i)}"]
    return o
def pack(dst, src, n): return [f"v_cvt_pk_bf16_f32 {v(dst+i)}, {v(src+2*i)}, {v(src+2*i+1)}" for i in range(n)]
def rnd2(r0, r1, t):
    return [f"v_cvt_pk_bf16_f32 {v(t)}, {v(r0)}, {v(r1)}", f"v_lshlrev_b32 {v(r0)}, 16, {v(t)}", f"v_and_b32 {v(r1)}, 0xffff0000, {v(t)}"]
def rnd1(r): return [f"v_cvt_pk_bf16_f32 {v(r)}, {v(r)}, {v(r)}", f"v_lshlrev_b32 {v(r)}, 16, {v(r)}"]
def rndn(r, n, t):
    o = pack(t, r, n // 2); return o + unpack(r, t, n // 2)
def allreduce(regs, tmps, op="v_add_f32", lo=1):
    o = []; pad = ["s_nop 1"] if len(regs) == 1 else (["s_nop 0"] if len(regs) == 2 else [])
    for sh in (8, 4, 2, 1):
        if sh < lo: continue
        o += pad if o else ["s_nop 1"]
        o += [f"{op}_dpp {v(r)}, {v(r)}, {v(r)} row_ror:{sh} {DPP}" for r in regs]
    for pl in ("v_permlane16_swap_b32", "v_permlane32_swap_b32"):
        o += [f"v_mov_b32 {v(t)}, {v(r)}" for r, t in zip(regs, tmps)] + (["s_nop 1"] if len(regs) < 2 else ["s_nop 0"] if len(regs) < 3 else [])
        o += [f"{pl} {v(r)}, {v(t)}" for r, t in zip(regs, tmps)]
        o += [f"{op} {v(r)}, {v(r)}, {v(t)}" for r, t in zip(regs, tmps)]
    return o
class Stamp:
    def __init__(self, on, kid): self.on = on; self.kid = kid
    def start(self): return ["s_memrealtime s[96:97]"] if self.on else []
    def end(self):
        if not self.on: return []
        return L(f"""s_waitcnt vmcnt(0) lgkmcnt(0)
        s_memrealtime s[98:99]
        s_load_dwordx2 s[94:95], s[0:1], {KA_WS}
        s_waitcnt lgkmcnt(0)
        s_add_u32 s94, s94, {WS_TIME + 65536 * (1 + self.kid)}
        s_addc_u32 s95, s95, 0
        s_mov_b64 exec, 1
        s_lshl_b32 s93, s2, 4
        v_mov_b32 v1, s93
        v_mov_b32 v2, s96
        v_mov_b32 v3, s98
        global_store_dwordx2 v1, v[2:3], s[94:95]""")

def ln_scalars(sm, sq, t):
    return L(f"""v_mul_f32 {v(sm)}, {f2u(1/1024)}, {v(sm)}
    v_mul_f32 {v(sq)}, {f2u(1/1024)}, {v(sq)}
    v_fma_f32 {v(sq)}, -{v(sm)}, {v(sm)}, {v(sq)}
    v_max_f32 {v(sq)}, 0, {v(sq)}""") + rnd2(sm, sq, t) + [f"v_add_f32 {v(sq)}, {f2u(1e-5)}, {v(sq)}"] + rnd1(sq) + \
      [f"v_sqrt_f32 {v(sq)}, {v(sq)}", "s_nop 0"] + rnd1(sq) + [f"v_rcp_f32 {v(sq)}, {v(sq)}", "s_nop 0"]
def sums(x, n, sm, sq):
    o = [f"v_add_f32 {v(sm)}, {v(x)}, {v(x+1)}", f"v_mul_f32 {v(sq)}, {v(x)}, {v(x)}", f"v_fmac_f32 {v(sq)}, {v(x+1)}, {v(x+1)}"]
    for i in range(2, n): o += [f"v_add_f32 {v(sm)}, {v(sm)}, {v(x+i)}", f"v_fmac_f32 {v(sq)}, {v(x+i)}, {v(x+i)}"]
    return o

def k_mod(name, st):
    o = L(f"""s_cmp_ge_u32 s2, 192
    s_cbranch_scc1 {name}_end""") + st.start() + L(f"""
    s_load_dwordx4 s[4:7], s[0:1], {KA_C}
    s_load_dwordx2 s[16:17], s[0:1], {KA_WS}
    s_and_b32 s3, s2, 7
    s_mul_i32 s3, s3, 24
    s_lshr_b32 s20, s2, 3
    s_add_u32 s3, s3, s20
    v_lshrrev_b32 v1, 2, v0
    v_and_b32 v2, 3, v0
    v_mul_u32_u24 v3, {8*12288}, v1
    v_lshl_add_u32 v3, v2, 4, v3
    s_lshl_b32 s20, s3, 6
    v_add_u32 v3, s20, v3
    v_lshlrev_b32 v1, 4, v1
    s_waitcnt lgkmcnt(0)""")
    o += srd(8, 4, 0, 2048) + srd(12, 6, 0, 1024 * 12288) + srd(16, 16, WS_MOD, 12288)
    o += ["buffer_load_dwordx4 v[4:7], v1, s[8:11], 0 offen"]
    for i in range(8):
        o += [f"s_mov_b32 s21, {i*12288}", f"buffer_load_dwordx4 {v(32+4*i,4)}, v3, s[12:15], s21 offen"]
    o += ["s_waitcnt vmcnt(8)"] + unpack(8, 4, 4)
    o += [f"v_mul_f32 {v(16+i)}, {f2u(-math.log2(math.e))}, {v(8+i)}" for i in range(8)]
    o += [f"v_exp_f32 {v(16+i)}, {v(16+i)}" for i in range(8)]
    o += [f"v_add_f32 {v(16+i)}, 1.0, {v(16+i)}" for i in range(8)]
    o += [f"v_rcp_f32 {v(16+i)}, {v(16+i)}" for i in range(8)]
    o += [f"v_mul_f32 {v(8+i)}, {v(8+i)}, {v(16+i)}" for i in range(8)] + rndn(8, 8, 4)
    for i in range(8):
        o += [f"s_waitcnt vmcnt({7-i})"] + unpack(24, 32 + 4*i, 4)
        o += [(f"v_fmac_f32 {v(16+e)}, {v(8+i)}, {v(24+e)}" if i else f"v_mul_f32 {v(16+e)}, {v(8+i)}, {v(24+e)}") for e in range(8)]
    o += ["s_nop 1"] + [f"v_permlane32_swap_b32 {v(16+e)}, {v(20+e)}" for e in range(4)] + [f"v_add_f32 {v(16+e)}, {v(16+e)}, {v(20+e)}" for e in range(4)]
    o += ["s_nop 1"] + [f"v_permlane16_swap_b32 {v(16+e)}, {v(18+e)}" for e in range(2)] + [f"v_add_f32 {v(16+e)}, {v(16+e)}, {v(18+e)}" for e in range(2)]
    for sh in (8, 4): o += ["s_nop 1"] + [f"v_add_f32_dpp {v(16+e)}, {v(16+e)}, {v(16+e)} row_ror:{sh} {DPP}" for e in range(2)]
    o += L(f"""v_lshrrev_b32 v4, 6, v0
    v_lshlrev_b32 v4, 7, v4
    v_lshl_add_u32 v4, v2, 5, v4
    v_bfe_u32 v5, v0, 4, 2
    v_lshl_add_u32 v4, v5, 3, v4
    ds_write_b64 v4, v[16:17]
    v_and_b32 v6, 31, v0
    v_lshlrev_b32 v5, 2, v6
    s_waitcnt lgkmcnt(0)
    s_barrier
    v_cmp_gt_u32 vcc, 32, v0
    s_and_saveexec_b64 s[22:23], vcc
    s_cbranch_execz {name}_fin""")
    o += [f"ds_read_b32 {v(8+i)}, v5 offset:{128*i}" for i in range(8)]
    o += L(f"""s_lshr_b32 s21, s3, 5
    s_cmp_eq_u32 s21, 1
    s_cselect_b32 s24, 1.0, 0
    s_cmp_eq_u32 s21, 4
    s_cselect_b32 s24, 1.0, s24
    v_lshl_add_u32 v6, v6, 1, s20
    s_waitcnt lgkmcnt(0)""")
    o += [f"v_add_f32 v8, v8, {v(8+i)}" for i in range(1, 8)] + rnd1(8)
    o += L(f"""v_add_f32 v8, s24, v8
    v_cvt_pk_bf16_f32 v8, v8, v8
    buffer_store_short v8, v6, s[16:19], 0 offen
    {name}_fin:""") + st.end() + [f"{name}_end:", "s_endpgm"]
    return o, dict(grid=192, block=512, lds=1024, vgpr=64)

def rowhead(name, st, loads):
    return L(f"""s_cmp_ge_u32 s2, 256
    s_cbranch_scc1 {name}_end""") + st.start() + L(loads) + L(f"""
    v_lshrrev_b32 v1, 6, v0
    v_and_b32 v0, 63, v0
    v_readfirstlane_b32 s3, v1
    s_lshl_b32 s30, s2, 3
    v_lshlrev_b32 v1, 4, v0
    s_add_u32 s3, s3, s30
    s_lshl_b32 s30, s3, 11
    s_waitcnt lgkmcnt(0)""")

def k_h(name, st):
    o = rowhead(name, st, f"s_load_dwordx2 s[8:9], s[0:1], {KA_X}\ns_load_dwordx2 s[4:5], s[0:1], {KA_WS}")
    o += srd(8, 8, 0, 4 << 20) + srd(12, 4, WS_MOD, 12288) + srd(16, 4, WS_H, 4 << 20)
    X, SA, A = 32, 48, 64
    o += L(f"""buffer_load_dwordx4 v[4:7], v1, s[8:11], s30 offen
    buffer_load_dwordx4 v[8:11], v1, s[8:11], s30 offen offset:1024
    buffer_load_dwordx4 v[12:15], v1, s[12:15], 0 offen
    buffer_load_dwordx4 v[16:19], v1, s[12:15], 0 offen offset:1024
    buffer_load_dwordx4 v[20:23], v1, s[12:15], 0 offen offset:2048
    buffer_load_dwordx4 v[24:27], v1, s[12:15], 0 offen offset:3072
    s_lshr_b32 s20, s3, 6
    s_lshl_b32 s20, s20, 17
    s_bfe_u32 s21, s3, 0x20004
    s_lshl_b32 s21, s21, 10
    s_add_u32 s20, s20, s21
    s_and_b32 s21, s3, 15
    s_lshl_b32 s21, s21, 4
    s_add_u32 s20, s20, s21
    s_add_u32 s21, s20, 65536
    v_lshrrev_b32 v2, 2, v0
    v_lshlrev_b32 v2, 12, v2
    v_and_b32 v3, 3, v0
    v_lshl_add_u32 v2, v3, 8, v2
    s_waitcnt vmcnt(4)""")
    o += unpack(X, 4, 8) + sums(X, 16, 28, 29) + allreduce([28, 29], [30, 31]) + ln_scalars(28, 29, 30)
    o += [f"v_sub_f32 {v(X+i)}, {v(X+i)}, v28" for i in range(16)]
    o += [f"v_mul_f32 {v(X+i)}, {v(X+i)}, v29" for i in range(16)]
    o += ["s_waitcnt vmcnt(0)"] + unpack(SA, 12, 8) + unpack(A, 20, 8)
    o += [f"v_fma_f32 {v(X+i)}, {v(X+i)}, {v(A+i)}, {v(SA+i)}" for i in range(16)] + pack(4, X, 8)
    o += ["buffer_store_dwordx4 v[4:7], v2, s[16:19], s20 offen", "buffer_store_dwordx4 v[8:11], v2, s[16:19], s21 offen"]
    o += st.end() + [f"{name}_end:", "s_endpgm"]
    return o, dict(grid=256, block=512, lds=0, vgpr=80)

def k_row2(name, st):
    o = rowhead(name, st, f"s_load_dwordx2 s[8:9], s[0:1], {KA_X}\ns_load_dwordx2 s[4:5], s[0:1], {KA_WS}\ns_load_dwordx2 s[20:21], s[0:1], {KA_WR}\ns_load_dwordx2 s[24:25], s[0:1], {KA_OUT}")
    o += srd(8, 8, 0, 4 << 20) + srd(12, 4, WS_MOD + 4096, 8192) + srd(16, 4, WS_PART, 16 << 20) + srd(20, 20, 0, 2048) + srd(24, 24, 0, 4 << 20)
    o += srd(32, 4, WS_H2, 4 << 20) + srd(36, 4, WS_KEY, 8192)
    for p in range(4):
        o += [f"s_add_u32 s31, s30, {p << 22}", f"buffer_load_dwordx4 {v(4+8*p,4)}, v1, s[16:19], s31 offen", f"buffer_load_dwordx4 {v(8+8*p,4)}, v1, s[16:19], s31 offen offset:1024"]
    o += L("""buffer_load_dwordx4 v[44:47], v1, s[12:15], 0 offen
    buffer_load_dwordx4 v[48:51], v1, s[12:15], 0 offen offset:1024
    buffer_load_dwordx4 v[36:39], v1, s[8:11], s30 offen
    buffer_load_dwordx4 v[40:43], v1, s[8:11], s30 offen offset:1024
    s_mov_b32 s31, 4096
    buffer_load_dwordx4 v[52:55], v1, s[12:15], 0 offen offset:2048
    buffer_load_dwordx4 v[56:59], v1, s[12:15], 0 offen offset:3072
    buffer_load_dwordx4 v[60:63], v1, s[12:15], s31 offen
    buffer_load_dwordx4 v[64:67], v1, s[12:15], s31 offen offset:1024
    buffer_load_dwordx4 v[76:79], v1, s[20:23], 0 offen
    buffer_load_dwordx4 v[80:83], v1, s[20:23], 0 offen offset:1024
    buffer_load_dwordx4 v[68:71], v1, s[12:15], s31 offen offset:2048
    buffer_load_dwordx4 v[72:75], v1, s[12:15], s31 offen offset:3072""")
    X, T, U = 84, 100, 4
    o += ["s_waitcnt vmcnt(18)"] + unpack(X, 4, 8)
    for p in range(1, 4):
        o += [f"s_waitcnt vmcnt({18-2*p})"] + unpack(T, 4 + 8*p, 8) + [f"v_add_f32 {v(X+i)}, {v(X+i)}, {v(T+i)}" for i in range(16)]
    o += rndn(X, 16, U)
    o += ["s_waitcnt vmcnt(10)"] + unpack(T, 44, 8) + [f"v_mul_f32 {v(X+i)}, {v(X+i)}, {v(T+i)}" for i in range(16)] + rndn(X, 16, U)
    o += ["s_waitcnt vmcnt(8)"] + unpack(T, 36, 8) + [f"v_add_f32 {v(X+i)}, {v(X+i)}, {v(T+i)}" for i in range(16)] + rndn(X, 16, U)
    o += sums(X, 16, 28, 29) + allreduce([28, 29], [30, 31]) + ln_scalars(28, 29, 30)
    H = 4; B = 32
    o += [f"v_sub_f32 {v(H+i)}, {v(X+i)}, v28" for i in range(16)]
    o += [f"v_mul_f32 {v(H+i)}, {v(H+i)}, v29" for i in range(16)]
    o += ["s_waitcnt vmcnt(4)"] + unpack(T, 60, 8) + unpack(B, 52, 8)
    o += [f"v_fma_f32 {v(H+i)}, {v(H+i)}, {v(T+i)}, {v(B+i)}" for i in range(16)] + pack(20, H, 8) + unpack(H, 20, 8)
    o += ["buffer_store_dwordx4 v[20:23], v1, s[32:35], s30 offen", "buffer_store_dwordx4 v[24:27], v1, s[32:35], s30 offen offset:1024"]
    o += ["s_waitcnt vmcnt(4)"] + unpack(T, 76, 8)
    o += [f"v_mul_f32 v28, {v(H)}, {v(T)}", f"v_mul_f32 v29, {v(H+1)}, {v(T+1)}"] + [f"v_fmac_f32 {v(28+(i&1))}, {v(H+i)}, {v(T+i)}" for i in range(2, 16)]
    o += ["v_add_f32 v28, v28, v29", "s_waitcnt vmcnt(2)"] + unpack(T, 68, 8)
    o += [f"v_mul_f32 {v(H+i)}, {v(H+i)}, {v(T+i)}" for i in range(16)] + rndn(H, 16, 32)
    o += [f"v_add_f32 {v(H+i)}, {v(H+i)}, {v(X+i)}" for i in range(16)] + pack(32, H, 8)
    o += ["buffer_store_dwordx4 v[32:35], v1, s[24:27], s30 offen", "buffer_store_dwordx4 v[36:39], v1, s[24:27], s30 offen offset:1024"]
    o += allreduce([28], [30])
    o += L(f"""v_ashrrev_i32 v29, 31, v28
    v_or_b32 v29, 0x80000000, v29
    v_xor_b32 v28, v28, v29
    v_and_b32 v28, 0xfffff800, v28
    s_sub_u32 s31, 2047, s3
    v_or_b32 v28, s31, v28
    s_lshl_b32 s31, s3, 2
    v_cmp_eq_u32 vcc, 0, v0
    s_and_saveexec_b64 s[40:41], vcc
    buffer_store_dword v28, v0, s[36:39], s31 offen""")
    o += st.end() + [f"{name}_end:", "s_endpgm"]
    return o, dict(grid=256, block=512, lds=0, vgpr=116)

def k_moe(name, st):
    o = L(f"""s_cmp_ge_u32 s2, 224
    s_cbranch_scc1 {name}_end""") + st.start() + L(f"""
    s_load_dwordx4 s[4:7], s[0:1], {KA_WG}
    s_load_dwordx2 s[16:17], s[0:1], {KA_WD}
    s_load_dwordx2 s[28:29], s[0:1], {KA_WS}
    v_lshrrev_b32 v1, 6, v0
    v_and_b32 v0, 63, v0
    v_readfirstlane_b32 s33, v1
    s_and_b32 s3, s2, 7
    s_mul_i32 s3, s3, 28
    s_lshr_b32 s34, s2, 3
    s_add_u32 s3, s3, s34
    v_lshlrev_b32 v1, 4, v0
    v_bfe_u32 v2, v0, 3, 2
    v_lshlrev_b32 v2, 3, v2
    v_lshrrev_b32 v3, 5, v0
    v_lshl_add_u32 v2, v3, 2, v2
    v_bfe_u32 v4, v0, 1, 2
    v_add_u32 v2, v2, v4
    v_mul_u32_u24 v2, 7168, v2
    v_and_b32 v4, 1, v0
    v_lshl_add_u32 v2, v4, 4, v2
    v_bfe_u32 v5, v0, 1, 4
    v_lshlrev_b32 v5, 11, v5
    v_lshl_add_u32 v5, v3, 5, v5
    v_lshl_add_u32 v5, v4, 4, v5
    s_mul_i32 s34, s33, {256*7168}
    s_lshl_b32 s35, s3, 5
    s_add_u32 s34, s34, s35
    s_lshl_b32 s35, s3, 15
    s_lshl_b32 s36, s33, 9
    s_add_u32 s35, s35, s36
    s_mul_i32 s37, s33, 24576
    s_waitcnt lgkmcnt(0)""")
    o += srd(8, 4, 0, 1024 * 7168) + srd(12, 6, 0, 1024 * 7168) + srd(16, 16, 0, 3584 * 2048) + srd(20, 28, WS_KEY, 8192 + 64)
    o += srd(24, 28, WS_H2, 4 << 20) + srd(28, 28, WS_YP, 224 * 8192)
    o += ["s_mov_b32 s38, 4096"]
    for i in range(8): o += [f"buffer_load_dwordx4 {v(16+4*i,4)}, v1, s[20:23], {'0' if i < 4 else 's38'} offen offset:{1024*(i&3)}"]
    for ks in range(8):
        for m in range(2):
            o += [f"s_add_u32 m0, s37, {(ks*2+m)*1024}", "s_nop 0", f"buffer_load_dwordx4 v2, {s(8+4*m,4)}, s34 offen lds"]
        o += [f"s_add_u32 s34, s34, {32*7168}"]
    for i in range(8):
        o += [f"s_add_u32 m0, s37, {16384+i*1024}", "s_nop 0", f"buffer_load_dwordx4 v5, s[16:19], s35 offen lds", "s_add_u32 s35, s35, 64"]
    o += ["s_waitcnt vmcnt(24)", "v_max_u32 v8, v16, v17", "v_min_u32 v9, v16, v17"]
    for i in range(2, 32): o += [f"v_med3_u32 v9, v8, v9, {v(16+i)}", f"v_max_u32 v8, v8, {v(16+i)}"]
    mrg = ["v_max_u32 v9, v9, v11", "v_med3_u32 v9, v8, v10, v9", "v_max_u32 v8, v8, v10"]
    for sh in (8, 4, 2, 1):
        o += ["s_nop 1", f"v_mov_b32_dpp v10, v8 row_ror:{sh} {DPP}", f"v_mov_b32_dpp v11, v9 row_ror:{sh} {DPP}"] + mrg
    for pl in ("v_permlane16_swap_b32", "v_permlane32_swap_b32"):
        o += ["v_mov_b32 v10, v8", "v_mov_b32 v11, v9", "s_nop 1", f"{pl} v8, v10", f"{pl} v9, v11"] + mrg
    o += L(f"""v_cmp_eq_u32 vcc, 1, v4
    s_lshl_b32 s36, s33, 9
    v_lshrrev_b32 v12, 4, v0
    v_cndmask_b32 v10, v8, v9, vcc
    v_and_b32 v11, 2047, v10
    v_sub_u32 v11, 2047, v11
    v_lshlrev_b32 v11, 11, v11
    v_lshl_add_u32 v11, v12, 4, v11""")
    o += [f"buffer_load_dwordx4 {v(16+4*ks,4)}, v11, s[24:27], s36 offen offset:{64*ks}" for ks in range(8)]
    o += L(f"""s_or_b32 s39, s2, s33
    s_cmp_lg_u32 s39, 0
    s_cbranch_scc1 {name}_nosel
    v_mov_b32 v13, 8192
    buffer_store_dwordx2 v[8:9], v13, s[20:23], 0 offen
    s_waitcnt vmcnt(0)
    {name}_nosel:
    v_lshlrev_b32 v6, 3, v0
    v_add_u32 v6, s37, v6
    s_waitcnt vmcnt(8)""")
    for i in range(32): o += [f"ds_read_b64_tr_b16 {a(2*i,2)}, v6 offset:{512*i}"] + (["s_waitcnt lgkmcnt(4)"] if i % 8 == 7 else [])
    for i in range(16): o += [f"ds_read_b64_tr_b16 {a(64+2*i,2)}, v6 offset:{16384+512*i}"] + (["s_waitcnt lgkmcnt(4)"] if i % 8 == 7 else [])
    o += ["s_waitcnt vmcnt(0) lgkmcnt(0)"]
    for ks in range(8):
        for m in range(2):
            o += [f"v_mfma_f32_16x16x32_bf16 {v(48+4*m,4)}, {a((ks*2+m)*4,4)}, {v(16+4*ks,4)}, {v(48+4*m,4) if ks else 0}"]
    o += L(f"""s_lshl_b32 s36, s33, 11
    s_add_u32 s36, s36, {4*24576}
    v_add_u32 v7, s36, v1
    v_add_u32 v13, {4*24576}, v1
    s_nop 4
    ds_write_b128 v7, v[48:51]
    ds_write_b128 v7, v[52:55] offset:1024
    s_waitcnt lgkmcnt(0)
    s_barrier""")
    o += [f"ds_read_b128 {v(16+4*i,4)}, v13 offset:{1024*i}" for i in range(8)] + ["s_waitcnt lgkmcnt(0)"]
    for w in range(1, 4): o += [f"v_add_f32 {v(16+i)}, {v(16+i)}, {v(16+8*w+i)}" for i in range(8)]
    o += rndn(16, 8, 24)
    o += [f"v_mul_f32 {v(24+i)}, {f2u(-math.log2(math.e))}, {v(16+i)}" for i in range(4)]
    o += [f"v_exp_f32 {v(24+i)}, {v(24+i)}" for i in range(4)] + [f"v_add_f32 {v(24+i)}, 1.0, {v(24+i)}" for i in range(4)]
    o += [f"v_rcp_f32 {v(24+i)}, {v(24+i)}" for i in range(4)] + [f"v_mul_f32 {v(16+i)}, {v(16+i)}, {v(24+i)}" for i in range(4)] + rndn(16, 4, 24)
    o += [f"v_mul_f32 {v(16+i)}, {v(16+i)}, {v(20+i)}" for i in range(4)] + pack(14, 16, 2)
    o += L(f"""v_and_b32 v11, 15, v0
    v_lshlrev_b32 v13, 12, v11
    v_lshl_add_u32 v13, v12, 4, v13
    s_lshl_b32 s36, s3, 13
    s_lshl_b32 s39, s33, 10
    s_add_u32 s36, s36, s39""")
    o += [f"v_mfma_f32_16x16x16_bf16 {v(16+4*i,4)}, {a(64+2*i,2)}, v[14:15], 0" for i in range(16)]
    o += ["v_cmp_gt_u32 vcc, 2, v11", "s_and_saveexec_b64 s[40:41], vcc", "s_nop 5"]
    o += [f"buffer_store_dwordx4 {v(16+4*i,4)}, v13, s[28:31], s36 offen offset:{64*i}" for i in range(16)]
    o += st.end() + [f"{name}_end:", "s_endpgm"]
    return o, dict(grid=224, block=256, lds=4*24576+8192, vgpr=80+96, accum=80)

def k_fin(name, st):
    o = L(f"""s_cmp_ge_u32 s2, 64
    s_cbranch_scc1 {name}_end""") + st.start() + L(f"""
    s_load_dwordx2 s[4:5], s[0:1], {KA_WS}
    s_load_dwordx2 s[12:13], s[0:1], {KA_OUT}
    v_and_b32 v1, 7, v0
    v_lshrrev_b32 v2, 3, v0
    v_mul_u32_u24 v2, {7*8192}, v2
    v_lshl_add_u32 v2, v1, 4, v2
    s_lshl_b32 s3, s2, 7
    s_lshr_b32 s30, s2, 5
    s_lshl_b32 s30, s30, 2
    s_add_u32 s30, s30, {WS_SEL}
    s_waitcnt lgkmcnt(0)
    s_load_dword s31, s[4:5], s30""")
    o += srd(8, 4, WS_YP, 224 * 8192) + srd(12, 12, 0, 4 << 20) + srd(16, 4, WS_H2, 4 << 20) + srd(20, 4, WS_MOD + 5 * 2048, 2048)
    for i in range(7): o += [f"buffer_load_dwordx4 {v(8+4*i,4)}, v2, s[8:11], s3 offen", "s_add_u32 s3, s3, 8192"]
    o += L(f"""s_and_b32 s32, s2, 31
    s_lshl_b32 s32, s32, 6
    v_lshlrev_b32 v3, 3, v1
    s_waitcnt lgkmcnt(0)
    s_and_b32 s33, s31, 2047
    s_sub_u32 s33, 2047, s33
    s_lshl_b32 s33, s33, 11
    s_add_u32 s33, s33, s32
    buffer_load_dwordx2 v[36:37], v3, s[12:15], s33 offen
    buffer_load_dwordx2 v[38:39], v3, s[16:19], s33 offen
    buffer_load_dwordx2 v[40:41], v3, s[20:23], s32 offen
    s_and_b32 s31, s31, 0xfffff800
    s_ashr_i32 s34, s31, 31
    s_not_b32 s34, s34
    s_or_b32 s34, s34, 0x80000000
    s_xor_b32 s31, s31, s34
    v_mov_b32 v4, s31""") + rnd1(4) + L(f"""
    v_mul_f32 v4, {f2u(-math.log2(math.e))}, v4
    v_exp_f32 v4, v4
    s_nop 0
    v_add_f32 v4, 1.0, v4
    v_rcp_f32 v4, v4
    s_nop 0""") + rnd1(4)
    for i in range(1, 7): o += [f"s_waitcnt vmcnt({9-i})"] + [f"v_add_f32 {v(8+e)}, {v(8+e)}, {v(8+4*i+e)}" for e in range(4)]
    o += allreduce([8, 9, 10, 11], [12, 13, 14, 15], lo=8)
    o += L(f"""v_lshrrev_b32 v5, 6, v0
    v_lshlrev_b32 v5, 7, v5
    v_lshl_add_u32 v5, v1, 4, v5
    ds_write_b128 v5, v[8:11]
    v_lshlrev_b32 v5, 4, v1
    s_waitcnt lgkmcnt(0)
    s_barrier
    v_cmp_gt_u32 vcc, 8, v0
    s_and_saveexec_b64 s[40:41], vcc
    s_cbranch_execz {name}_fin""")
    o += [f"ds_read_b128 {v(8+4*i,4)}, v5 offset:{128*i}" for i in range(4)] + ["s_waitcnt vmcnt(0) lgkmcnt(0)"]
    for w in range(1, 4): o += [f"v_add_f32 {v(8+e)}, {v(8+e)}, {v(8+4*w+e)}" for e in range(4)]
    o += rndn(8, 4, 12) + [f"v_mul_f32 {v(8+e)}, {v(8+e)}, v4" for e in range(4)] + rndn(8, 4, 12)
    o += unpack(16, 36, 2) + unpack(20, 38, 2) + unpack(24, 40, 2)
    o += [f"v_add_f32 {v(8+e)}, {v(8+e)}, {v(20+e)}" for e in range(4)] + rndn(8, 4, 12)
    o += [f"v_mul_f32 {v(8+e)}, {v(8+e)}, {v(24+e)}" for e in range(4)] + rndn(8, 4, 12)
    o += [f"v_mul_f32 {v(20+e)}, {v(20+e)}, {v(24+e)}" for e in range(4)] + rndn(20, 4, 12)
    o += [f"v_sub_f32 {v(16+e)}, {v(16+e)}, {v(20+e)}" for e in range(4)]
    o += [f"v_add_f32 {v(8+e)}, {v(8+e)}, {v(16+e)}" for e in range(4)] + pack(12, 8, 2)
    o += ["buffer_store_dwordx2 v[12:13], v3, s[12:15], s33 offen", f"{name}_fin:"]
    o += st.end() + [f"{name}_end:", "s_endpgm"]
    return o, dict(grid=64, block=256, lds=512, vgpr=48)
```

```python
import sys
from asmlib import Asm
from check import check
from layout import *
import small, attn16
NAME = "adaLN_cond__mha_block_cached__moe_arch_mod__prompt"
def header():
    ref = open(f"cdna_kernels/{NAME}.s.ref").read().split("\n")
    out = []
    for l in ref:
        if l.startswith("; Override"): break
        out.append(l)
    return "\n".join(out)
def generate(fn, stamps=False, **kw):
    A = Asm(); bad = 0
    def add(name, text, trace, grid, block, lds, vgpr, accum=None):
        nonlocal bad
        bad += len(check(trace, name))
        A.kernel(name + "_kernel", vgpr, accum or ((vgpr + 3) // 4 * 4)); A("\n".join(text)); A.launch(name + "_kernel", grid, block, lds)
    St = lambda k: small.Stamp(stamps, k)
    t, p = small.k_mod("mod", St(0)); add("mod", t, t, **p)
    t, p = small.k_h("hk", St(1)); add("hk", t, t, **p)
    cfg = attn16.Cfg(stamps=stamps, **kw)
    t, tr = attn16.Attn(cfg).build("attn"); add("attn", t, tr, 256, 256, cfg.LDS, 512, 256)
    t, tr = attn16.Attn(cfg).build_oproj("oproj", St(3)); add("oproj", t, tr, 256, 256, 8 * attn16.WBLK, 512, 256)
    t, p = small.k_row2("row2", St(4)); add("row2", t, t, **p)
    t, p = small.k_moe("moe", St(5)); add("moe", t, t, **p)
    t, p = small.k_fin("fin", St(6)); add("fin", t, t, **p)
    open(fn, "w").write(A.text(header()))
    return bad
if __name__ == "__main__":
    kw = dict(eval(sys.argv[2])) if len(sys.argv) > 2 else {}
    generate(sys.argv[1], **kw)
```

```python
class Asm:
    def __init__(self):
        self.lines = []
        self.kernels = []
        self.launches = []
        self.uid = 0
    def __call__(self, s):
        for l in s.split("\n"):
            l = l.strip()
            if l:
                if ' lds ' in l + ' ' and l.startswith('buffer_'):
                    l = l.replace(' lds', '').rstrip() + ' lds'
                self.lines.append(l)
    def label(self, n): self.lines.append(n + ":")
    def newlabel(self, p="L"):
        self.uid += 1
        return f"{p}_{self.uid}"
    def kernel(self, name, vgpr, accum, sgpr=102):
        self.kernels.append((name, vgpr, accum, sgpr))
        self.lines += [f".globl {name}", ".p2align 8", f".type {name},@function", f"{name}:"]
    def launch(self, name, grid, block, lds):
        self.launches.append(f"; @launch kernel={name} grid=({grid},1,1) block=({block},1,1) lds={lds}")
    def text(self, header=""):
        out = [header] if header else []
        out += self.launches
        out += ['.amdgcn_target "amdgcn-amd-amdhsa--gfx950"', ".text"]
        for l in self.lines:
            out.append(l if (l.endswith(":") or l.startswith(".")) else "    " + l)
        out += ['.section .rodata,"a"']
        for (name, vgpr, accum, sgpr) in self.kernels:
            out += [".p2align 6", f".amdhsa_kernel {name}",
                    f"  .amdhsa_next_free_vgpr {vgpr}", f"  .amdhsa_next_free_sgpr {sgpr}",
                    f"  .amdhsa_accum_offset {accum}", "  .amdhsa_group_segment_fixed_size 0",
                    "  .amdhsa_kernarg_size 120", "  .amdhsa_user_sgpr_count 2",
                    "  .amdhsa_user_sgpr_kernarg_segment_ptr 1", "  .amdhsa_system_sgpr_workgroup_id_x 1",
                    "  .amdhsa_float_denorm_mode_32 3",
                    ".end_amdhsa_kernel"]
        return "\n".join(out) + "\n"
```

```python
WS_H    = 0
WS_O    = 4 << 20
WS_AR   = 20 << 20
WS_MP1  = 28 << 20
WS_TAG  = WS_MP1 + 65536
WS_FL   = WS_MP1 + 131072
WS_SENT = WS_MP1 + 262144
WS_MP2  = WS_SENT
WS_ST   = WS_SENT + 262144
WS_KEY  = WS_ST + 524288
SENT_BYTES = 262144 + 524288 + 8192
WS_S1   = 30 << 20
WS_USED = 31 << 20
WS_TIME = 48 << 20
WS_SIZE = 256 << 20
KA_X, KA_K, KA_V, KA_WQ, KA_WO, KA_BX, KA_WR, KA_WG, KA_WU, KA_WD, KA_C, KA_WMOD, KA_OUT, KA_DBG, KA_WS = [8 * i for i in range(15)]
```

```python
from layout import *
from small import *
import math
MF = "v_mfma_f32_16x16x32_bf16"
G = 4160; SLOT = 4 * G; WBLK = 8448; BIAS = 4096
RING = 6; LEAD = 4; WBASE = 5 * SLOT
STG = 163840 - 49152
LV = 16 * WBLK
LDN = 8 * WBLK
SPIN = 400000
vKa, vVa, vKa2, vVa2, vWa, vD0, vD1, vD2, vD3, vW0, vW1, vH = 1, 2, 3, 4, 5, 6, 7, 8, 9, 10, 11, 12
OB = 16; SB = 144; PB = 208
vSent, vBm, vBg, vBt, vDum, vL = 240, 244, 245, 246, 247, 248
QB = 0; KF = 64; VF = 96; LB = 128; ONES = 144
WFQ = 0; HF = 128
GU = 148; WM = 212; SI = 244; CP = 252
sK, sV, sW, sH, sWD = 8, 12, 16, 20, 24
sX, sG, sWO, sWR, sU, sWM, sOUT, sWS = 40, 44, 48, 52, 56, 60, 64, 68
sHead, sWv, sMkv, sMw, sOffKV, sOffW, sOffH, sCnt, sRb = 3, 28, 29, 30, 31, 32, 33, 34, 35
sLim, sR, sBm, sBo0, sBo1, sAr = 72, 73, 74, 75, 76, 77
sT0 = 78
def O(db, qb): return OB + (db * 4 + qb) * 4
def S(par, t, qb): return SB + par * 32 + (qb * 2 + t) * 4
def P(par, qb): return PB + par * 16 + qb * 4
def Q(qb, ks): return QB + (qb * 4 + ks) * 4
def A(qb, nb): return OB + (qb * 8 + nb) * 4
def q4(r): return s(r, 4)
def weave(mf, gaps, pre=()):
    out = list(pre)
    for i, m in enumerate(mf):
        out.append(m); out += gaps.get(i, [])
    for k in sorted(gaps):
        if k >= len(mf): out += gaps[k]
    return out
def spread(items, g, first, last, per=2):
    for i, e in enumerate(items): g.setdefault(min(last, first + i // per), []).append(e)
class VM:
    def __init__(self): self.ops = []
    def issue(self, tag, n=1): self.ops += [tag] * n
    def need(self, *tags):
        last = max(i for i, t in enumerate(self.ops) if t in tags)
        return min(63, len(self.ops) - 1 - last)
def anysent(r, n, t0, t1):
    o = [f"v_max3_u32 {v(t0)}, {v(r)}, {v(r+1)}, {v(r+1)}"] if n == 2 else [f"v_max_u32 {v(t0)}, {v(r)}, {v(r+1)}", f"v_max_u32 {v(t1)}, {v(r+2)}, {v(r+3)}"]
    for k, i in enumerate(range(4, n, 2)): o += [f"v_max3_u32 {v((t0, t1)[k & 1])}, {v((t0, t1)[k & 1])}, {v(r+i)}, {v(r+i+1)}"]
    if n > 2: o += [f"v_max_u32 {v(t0)}, {v(t0)}, {v(t1)}"]
    return o + [f"v_cmp_eq_u32 vcc, -1, {v(t0)}"]

class Mega:
    def __init__(self, opt, stamps):
        self.o = opt; self.stamps = stamps; self.nst = 0; self.ool = []; self.npoll = 0
    def stamp(self):
        if not self.stamps: return []
        r = self.nst; self.nst += 1; assert r < 16
        return ["s_memrealtime s[100:101]", "s_memtime s[98:99]", "s_waitcnt lgkmcnt(0)", f"v_writelane_b32 v255, s100, {r}", f"v_writelane_b32 v255, s98, {16+r}"]
    def poll(self, name, loads, check, vm=0):
        self.npoll += 1; n = f"{name}_p{self.npoll}"
        inl = [f"s_waitcnt vmcnt({vm})"] + check + ["s_mov_b32 s4, 0", "s_nop 0", f"s_cbranch_vccnz {n}_r", f"{n}_k:"]
        rt = [f"{n}_r:"] + ([f"s_sleep {self.o['slp']}"] if self.o.get('slp') else []) + loads + ["s_waitcnt vmcnt(0)"] + check + ["s_add_u32 s4, s4, 1", f"s_cmp_ge_u32 s4, {SPIN}", f"s_cbranch_scc1 {n}_k", f"s_cbranch_vccnz {n}_r", f"s_branch {n}_k"]
        self.ool += rt
        return inl, inl + rt
    def kreads(self, slot, dst=KF):
        rs = (slot - LEAD) % RING; r, o = (vKa, rs * SLOT) if rs < 3 else (vKa2, (rs - 3) * SLOT)
        return [f"ds_read_b128 {a(dst + (t*4+ks)*4, 4)}, {v(r)} offset:{o + 512*t + 64*ks}" for t in range(2) for ks in range(4)]
    def vreads(self, slot, dst=VF):
        rs = (slot - LEAD) % RING; r, o = (vVa, rs * SLOT) if rs < 3 else (vVa2, (rs - 3) * SLOT)
        return [f"ds_read_b64_tr_b16 {a(dst + db*4 + 2*tt, 2)}, {v(r)} offset:{o + 512*tt + 32*db}" for db in range(8) for tt in range(2)]
    def dma_setup(self, slot): return [f"s_add_u32 m0, s{sMkv}, {(slot % RING) * SLOT}", f"s_add_u32 s{sOffKV}, s{sOffKV}, 8192"]
    def dmas(self, k=True, vv=True):
        nt = self.o.get('ntkv', 'nt'); o = []
        if k: o += [f"buffer_load_dwordx4 {v(vD0)}, {q4(sK)}, s{sOffKV} offen lds {nt}", f"buffer_load_dwordx4 {v(vD1)}, {q4(sK)}, s{sOffKV} offen offset:1056 lds {nt}"]
        if vv: o += [f"buffer_load_dwordx4 {v(vD2)}, {q4(sV)}, s{sOffKV} offen offset:2080 lds {nt}", f"buffer_load_dwordx4 {v(vD3)}, {q4(sV)}, s{sOffKV} offen offset:3136 lds {nt}"]
        return o
    def qk(self, par, kf=KF, c0=None):
        out = []
        for t in range(2):
            for qb in range(4):
                for ks in range(4):
                    d = v(S(par, t, qb), 4); c = d if ks else ("0" if c0 is None else v(c0 + 4 * qb, 4))
                    out.append(f"{MF} {d}, {a(kf + (t*4+ks)*4, 4)}, {a(Q(qb, ks), 4)}, {c}")
        return out
    def pv(self, par, vf=VF):
        out = [f"{MF} {a(LB+4*qb,4)}, {a(ONES,4)}, {v(P(par,qb),4)}, {a(LB+4*qb,4)}" for qb in range(4)]
        return out + [f"{MF} {v(O(db,qb),4)}, {a(vf+db*4,4)}, {v(P(par,qb),4)}, {v(O(db,qb),4)}" for db in range(8) for qb in range(4)]
    def exps(self, par): return [f"v_exp_f32 {v(SB+par*32+e)}, {v(SB+par*32+e)}" for e in range(32)]
    def cvts(self, par): return [f"v_cvt_pk_bf16_f32 {v(PB+par*16+n)}, {v(SB+par*32+2*n)}, {v(SB+par*32+2*n+1)}" for n in range(16)]
    def sync(self, slot, force=False, vm=8):
        if force or slot % 2 == 0: return [f"s_waitcnt vmcnt({vm}) lgkmcnt(0)", "s_barrier"]
        return ["s_waitcnt lgkmcnt(0)"]
    def slot(self, b, tail=(), extra=None, vm=8):
        mf = self.qk((b + 1) & 1) + self.pv((b - 1) & 1)
        ex = self.exps(b & 1); cv = self.cvts(b & 1); vr = self.vreads(b); kr = self.kreads(b); dm = self.dmas()
        g = {i: [] for i in range(len(mf))}
        for e in range(32): g[2 * e].append(ex[e])
        K = lambda k: g[2 * k + 1]
        K(0).extend(self.dma_setup(b))
        for k in range(1, 9): K(k).extend(vr[2*k-2:2*k])
        K(9).append(dm[0]); K(10).extend(cv[0:2]); K(11).extend(cv[2:4]); K(12).extend(cv[4:6])
        K(13).append(dm[1]); K(14).append(cv[6]); K(15).append("s_waitcnt lgkmcnt(0)")
        for k in range(16, 20): K(k).extend(kr[2*(k-16):2*(k-16)+2])
        K(20).append(dm[2]); K(21).extend(cv[7:9]); K(22).extend(cv[9:11]); K(24).append(dm[3])
        K(25).append(cv[11]); K(27).append(cv[12]); K(29).append(cv[13]); K(30).append(cv[14]); K(31).append(cv[15])
        g[64].extend(tail[:-1]); g[67].extend(tail[-1:])
        if extra:
            for k, e in extra.items(): g[k].extend(e)
        return weave(mf, g, self.sync(b, vm=vm))
    def bg(self, k):
        nt = self.o.get('ntbg', 'nt'); ntg = self.o.get('ntg', 'nt')
        if self.o.get('nobg'): return {}, 0
        g, n = self.bg_(k)
        off = self.o.get('bgoff', ())
        for key in list(g):
            keep = [x for x in g[key] if not any(o in x for o in off)]
            n -= len(g[key]) - len(keep); g[key] = keep
        return g, n
    def bg_(self, k):
        nt = self.o.get('ntbg', 'nt'); ntg = self.o.get('ntg', 'nt')
        if k == 0: return {45: [f"s_min_u32 s7, s{sCnt}, 7"], 47: [f"s_mul_i32 s5, s{sR}, {8*12288}", f"s_add_u32 s5, s5, s{sBo0}"], 51: [f"s_mov_b32 m0, s{sBm}"],
                           53: [f"buffer_load_dwordx4 {v(vBm)}, {q4(sWM)}, s5 offen lds {nt}"], 55: [f"s_and_b32 s6, s{sR}, 3"], 57: ["s_lshl_b32 s6, s6, s78"],
                           65: [f"buffer_load_dword {v(vDum)}, {v(vBt)}, {q4(sWO)}, s6 offen"]}, 2
        if k == 1: return {47: [f"s_mul_i32 s5, s{sR}, {32*7168}", f"s_add_u32 s5, s5, s{sBo1}"], 51: [f"s_add_u32 m0, s{sBm}, 1024"],
                           53: [f"buffer_load_dwordx4 {v(vBg)}, {q4(sG)}, s5 offen lds {ntg}"]}, 1
        if k == 2: return {47: [f"s_lshl_b32 s7, s7, 10", f"s_add_u32 s6, s7, s{sAr}"], 51: [f"s_add_u32 m0, s{sBm}, 2048"],
                           53: [f"buffer_load_dwordx4 {v(vBg)}, {q4(sU)}, s5 offen lds {ntg}"], 57: ["s_sub_u32 s6, s6, 1024"]}, 1
        if k == 3: return {53: [f"buffer_store_dwordx4 {v(vSent,4)}, {v(vH)}, {q4(sWS)}, s6 offen sc1"],
                           57: [f"s_bitcmp1_b32 {sum(1 << i for i in (1,2,3,5,6,7,8))}, s{sCnt}", f"s_addc_u32 s{sR}, s{sR}, 0"],
                           64: [f"s_and_b32 s5, s{sR}, 3", f"s_mul_i32 s5, s5, 3072"], 65: [f"s_mul_i32 s{sBm}, s{sWv}, 12288", f"s_add_u32 s5, s5, {STG}"],
                           66: [f"s_add_u32 s{sBm}, s{sBm}, s5"]}, 1
        return {}, 0
    def stg_reads(self, half):
        o = L(f"""s_mul_i32 s5, s{sWv}, 12288
        s_add_u32 s5, s5, {STG}
        v_lshl_add_u32 v13, v0, 3, s5
        v_lshrrev_b32 v14, 4, v0
        v_mul_u32_u24 v14, 3072, v14
        v_bfe_u32 v15, v0, 2, 2
        v_lshl_add_u32 v14, v15, 7, v14
        v_and_b32 v15, 3, v0
        v_lshl_add_u32 v14, v15, 3, v14
        v_add_u32 v14, s5, v14""")
        r = [f"ds_read_b64_tr_b16 {a(WM+half*16+nb*4+2*tt,2)}, v14 offset:{512*tt+32*nb}" for nb in range(4) for tt in range(2)]
        r += [f"ds_read_b64_tr_b16 {a(GU+((half*4+p)*2+m)*4+2*tt,2)}, v13 offset:{3072*p+1024*(m+1)+512*tt}" for p in range(4) for m in range(2) for tt in range(2)]
        return o + r[:12] + ["s_waitcnt lgkmcnt(2)"] + r[12:]
    def wreads(self, n):
        o = (n % 8) * WBLK; d = WFQ + (n & 1) * 32
        return [f"ds_read_b64_tr_b16 {a(d + db*4 + 2*tt, 2)}, {v(vWa)} offset:{o + 512*tt + 64*(db>>1) + 8*(db&1)}" for db in range(8) for tt in range(2)]
    def wdma(self, n):
        nt = self.o.get('ntw', 'nt')
        return [f"s_add_u32 m0, s{sMw}, {(n % 8) * WBLK}", f"s_add_u32 s{sOffW}, s{sOffW}, {32*8192}",
                f"buffer_load_dwordx4 {v(vW0)}, {q4(sW)}, s{sOffW} offen lds {nt}", f"buffer_load_dwordx4 {v(vW1)}, {q4(sW)}, s{sOffW} offen offset:1056 lds {nt}"]
    def hload(self, n):
        return [f"s_add_u32 s{sOffH}, s{sOffH}, {1 << 17}"] + \
               [f"buffer_load_dwordx4 {a(HF + (n % 8)*16 + qb*4, 4)}, {v(vH)}, {q4(sWS)}, s{sOffH} offen offset:{1024*qb} sc1" for qb in range(4)]
    def qstep(self, n, vm, extra=None, extra_vm=0):
        D = self.o.get('D', 4); DW = self.o.get('DW', 7)
        mf = [f"{MF} {v(O(db,qb),4)}, {a(WFQ+(n&1)*32+db*4,4)}, {a(HF+(n%8)*16+qb*4,4)}, {v(O(db,qb),4) if n else 0}" for db in range(8) for qb in range(4)]
        cnt = vm.need(f"H{n}", f"W{min(n+1,31)}")
        g = {i: [] for i in range(32)}
        if n + D <= 31:
            hl = self.hload(n + D); g[1] += [hl[0]]
            for k in range(4): g[3 + 4*k] += [hl[1 + k]]
            vm.issue(f"H{n+D}", 4)
        if n + DW + 1 <= 31:
            wd = self.wdma(n + DW + 1); g[0] += wd[0:2]; g[19] += [wd[2]]; g[23] += [wd[3]]
            vm.issue(f"W{n+DW+1}", 2)
        vm.issue("X", extra_vm)
        if n < 31:
            wr = self.wreads(n + 1)
            for k in range(8): g[2 + 2*k] += wr[2*k:2*k+2]
        if extra:
            for k, e in extra.items(): g[k] += e
        return weave(mf, g, [f"s_waitcnt vmcnt({cnt}) lgkmcnt(0)"] + (["s_barrier"] if n < 31 else []))
    def pack(self, table, scale):
        o = []
        for sidx in range(4):
            for qb in range(4):
                for t in range(2):
                    b = O(2*sidx + t, qb)
                    o += [f"v_pk_mul_f32 {v(b+2*u,2)}, {v(b+2*u,2)}, {scale(qb)} op_sel_hi:[1,0]" for u in range(2)]
                for t in range(2):
                    b = O(2*sidx + t, qb)
                    o += [f"v_cvt_pk_bf16_f32 {v(SB+(sidx*4+qb)*4+2*t+u)}, {v(b+2*u)}, {v(b+2*u+1)}" for u in range(2)]
                o += table(sidx, qb, SB + (sidx*4+qb)*4)
        return o
    def front(self, name):
        D = self.o.get('D', 4)
        pro = L(f"""s_cmp_ge_u32 s2, 256
        s_cbranch_scc1 {name}_end""") + self.stamp() + L(f"""
        s_load_dwordx16 s[40:55], s[0:1], 0
        s_load_dwordx8 s[56:63], s[0:1], 64
        s_load_dwordx2 s[64:65], s[0:1], {KA_OUT}
        s_load_dwordx2 s[68:69], s[0:1], {KA_WS}
        v_lshrrev_b32 v13, 6, v0
        v_lshlrev_b32 v224, 4, v0
        v_readfirstlane_b32 s{sWv}, v13
        v_and_b32 v0, 63, v0
        v_add_u32 v225, 4096, v224
        v_lshlrev_b32 {v(vH)}, 4, v0
        s_and_b32 s3, s2, 7
        s_lshl_b32 s3, s3, 2
        s_bfe_u32 s35, s2, 0x20003
        s_add_u32 s3, s3, s35
        s_andn2_b32 s39, s2, 31
        s_add_u32 s39, s39, s3
        s_lshl_b32 s36, s39, 14
        s_lshl_b32 s37, s{sWv}, 12
        s_add_u32 s36, s36, s37
        s_mov_b32 s4, {WS_MP1}
        s_mov_b32 s5, {WS_MP1 + 8192}
        s_mov_b32 s6, {WS_MP1 + 16384}
        s_mov_b32 s7, {WS_MP1 + 24576}
        s_waitcnt lgkmcnt(0)""") + srd(sWS, 68, 0, WS_USED) + srd(sH, 40, 0, 4 << 20)
        MPR, XR, X, SA, AA = 144, 176, 192, 144, 160
        pro += [f"buffer_load_dwordx4 {v(MPR+8*p+4*h,4)}, {v(224+h)}, {q4(sWS)}, s{4+p} offen" for p in range(4) for h in range(2)]
        pro += [f"buffer_load_dwordx4 {v(XR+4*i,4)}, {v(vH)}, {q4(sH)}, s36 offen offset:{1024*i}" for i in range(4)]
        pro += L(f"""s_lshr_b32 s35, s2, 5
        s_lshl_b32 s35, s35, 2
        s_add_u32 s35, s35, s{sWv}
        s_mul_i32 s{sMkv}, s{sWv}, {G}
        s_mul_i32 s{sMw}, s{sWv}, 2112
        s_add_u32 s{sMw}, s{sMw}, {WBASE}
        v_lshrrev_b32 v13, 4, v0
        v_and_b32 v14, 15, v0
        v_lshlrev_b32 v15, 4, v14
        s_lshr_b32 s36, s{sWv}, 1
        s_lshl_b32 s36, s36, 16
        s_and_b32 s37, s{sWv}, 1
        s_lshl_b32 s37, s37, 14
        s_add_u32 s36, s36, s37
        v_and_b32 v14, 1, v13
        v_lshl_add_u32 {v(vW0)}, v14, 17, v15
        v_lshrrev_b32 v14, 1, v13
        v_lshl_add_u32 {v(vW0)}, v14, 15, {v(vW0)}
        v_add_u32 {v(vW0)}, s36, {v(vW0)}
        v_add_u32 {v(vW1)}, {8192-1056}, {v(vW0)}
        s_lshl_b32 s36, s3, 8
        s_lshl_b32 s{sOffH}, s35, 12
        s_add_u32 s{sOffH}, s{sOffH}, {(WS_H - (1 << 17)) & 0xffffffff}
        s_mov_b32 s{sOffW}, {(-32*8192) & 0xffffffff}""") + srd(sW, 46, "s36", 1023*8192+256)
        DW = self.o.get('DW', 7); vm = VM(); wb = self.o.get('wb', 0); w0 = []
        for n in range(DW + 1): w0 += self.wdma(n); vm.issue(f"W{n}", 2)
        if wb == 2: pro += w0
        ne = 2 * (DW + 1) if wb == 2 else 0
        pro += L(f"""s_lshl_b32 s36, s3, 19
        s_add_u32 s8, s42, s36
        s_addc_u32 s9, s43, 0
        s_sub_u32 s8, s8, {BIAS}
        s_subb_u32 s9, s9, 0
        s_mov_b32 s10, {BIAS + 524288}
        s_mov_b32 s11, 0x20000
        s_add_u32 s12, s44, s36
        s_addc_u32 s13, s45, 0
        s_sub_u32 s12, s12, {BIAS + 3*8192}
        s_subb_u32 s13, s13, 0
        s_mov_b32 s14, {BIAS + 3*8192 + 524288}
        s_mov_b32 s15, 0x20000""")
        pro += srd(sX, 40, 0, 4 << 20) + srd(sG, 54, 0, 1024*7168) + srd(sWO, 48, 0, 8 << 20) + srd(sWR, 52, 0, 2048) + srd(sWD, 58, 0, 3584*2048)
        pro += srd(sU, 56, 0, 1024*7168) + srd(sWM, 62, 0, 1024*12288) + srd(sOUT, 64, 0, 4 << 20)
        pro += L(f"""s_mov_b32 s{sOffKV}, {(-8192) & 0xffffffff}
        s_lshl_b32 s36, s{sWv}, 9
        s_add_u32 s36, s36, {BIAS}
        v_lshl_add_u32 {v(vD0)}, v13, 11, v15
        v_add_u32 {v(vD0)}, s36, {v(vD0)}
        v_add_u32 {v(vD1)}, {(256-1056) & 0xffffffff}, {v(vD0)}
        v_add_u32 {v(vD2)}, {(-2080) & 0xffffffff}, {v(vD0)}
        v_add_u32 {v(vD3)}, {(256-3136) & 0xffffffff}, {v(vD0)}
        v_bfe_u32 v15, v0, 1, 2
        v_mul_u32_u24 {v(vKa)}, {G}, v15
        v_and_b32 v15, 1, v0
        v_mul_u32_u24 v15, 1056, v15
        v_add_u32 {v(vKa)}, {v(vKa)}, v15
        v_bfe_u32 v15, v0, 3, 1
        v_lshl_add_u32 {v(vKa)}, v15, 8, {v(vKa)}
        v_lshl_add_u32 {v(vKa)}, v13, 4, {v(vKa)}
        v_bfe_u32 v15, v0, 3, 2
        v_mul_u32_u24 {v(vVa)}, {G}, v15
        v_bfe_u32 v15, v0, 2, 1
        v_mul_u32_u24 v15, 1056, v15
        v_add_u32 {v(vVa)}, {v(vVa)}, v15
        v_lshrrev_b32 v15, 5, v0
        v_lshl_add_u32 {v(vVa)}, v15, 8, {v(vVa)}
        v_and_b32 v14, 3, v0
        v_lshl_add_u32 {v(vVa)}, v14, 3, {v(vVa)}
        v_add_u32 {v(vVa)}, 2080, {v(vVa)}
        v_add_u32 {v(vKa2)}, {3*SLOT}, {v(vKa)}
        v_add_u32 {v(vVa2)}, {3*SLOT}, {v(vVa)}
        v_bfe_u32 v13, v0, 2, 3
        v_mul_u32_u24 {v(vWa)}, 1056, v13
        v_lshl_add_u32 {v(vWa)}, v15, 8, {v(vWa)}
        v_lshl_add_u32 {v(vWa)}, v14, 4, {v(vWa)}
        v_add_u32 {v(vWa)}, {WBASE}, {v(vWa)}
        s_mov_b32 s{sCnt}, 0""")
        pro += L(f"""v_lshrrev_b32 v13, 3, v0
        v_mul_u32_u24 {v(vBm)}, 12288, v13
        v_and_b32 v14, 7, v0
        v_lshl_add_u32 {v(vBm)}, v14, 4, {v(vBm)}
        s_lshl_b32 s36, s2, 2
        s_add_u32 s36, s36, s{sWv}
        s_lshl_b32 s{sAr}, s36, 13
        s_add_u32 s{sAr}, s{sAr}, {WS_AR}
        s_lshl_b32 s37, s36, 13
        v_and_b32 v13, 15, v0
        v_lshl_add_u32 {v(vBt)}, v13, 7, s37
        s_mov_b32 s78, 11
        s_lshr_b32 s37, s2, 6
        s_lshl_b32 s37, s37, 2
        s_add_u32 s37, s37, s{sWv}
        s_mul_i32 s{sBo0}, s37, {64*12288}
        s_and_b32 s38, s2, 63
        s_lshl_b32 s38, s38, 7
        s_add_u32 s{sBo0}, s{sBo0}, s38
        s_add_u32 s{sBo0}, s{sBo0}, 4096
        v_bfe_u32 v13, v0, 3, 2
        v_lshlrev_b32 v13, 3, v13
        v_lshl_add_u32 v13, v15, 2, v13
        v_bfe_u32 v14, v0, 1, 2
        v_add_u32 v13, v13, v14
        v_mul_u32_u24 {v(vBg)}, 7168, v13
        v_and_b32 v14, 1, v0
        v_lshl_add_u32 {v(vBg)}, v14, 4, {v(vBg)}
        s_and_b32 s36, s2, 7
        s_mul_i32 s36, s36, 28
        s_lshr_b32 s37, s2, 3
        s_add_u32 s36, s36, s37
        s_lshl_b32 s36, s36, 5
        s_mul_i32 s{sBo1}, s{sWv}, {256*7168}
        s_add_u32 s{sBo1}, s{sBo1}, s36
        s_cmp_ge_u32 s2, 224
        s_cselect_b32 s{sBo1}, 0x10000000, s{sBo1}
        s_mul_i32 s{sBm}, s{sWv}, 12288
        s_add_u32 s{sBm}, s{sBm}, {STG}
        s_mov_b32 s{sR}, 0
        s_mov_b32 s{sLim}, 6""") + [f"v_mov_b32 {v(vSent+i)}, -1" for i in range(4)]
        pro += L(f"""v_and_b32 v13, 7, v0
        s_lshl_b32 s36, s{sWv}, 1
        v_xor_b32 v14, s36, v13
        v_lshlrev_b32 v226, 7, v0
        v_lshl_add_u32 v226, v14, 4, v226
        v_add_u32 v226, 8192, v226
        v_xor_b32 v227, 16, v226
        v_lshrrev_b32 v14, 3, v0
        v_xor_b32 v15, v13, v14
        v_lshlrev_b32 v228, 7, v14
        v_lshl_add_u32 v228, v15, 4, v228
        s_lshl_b32 s36, s{sWv}, 12
        s_add_u32 s36, s36, 8192
        v_add_u32 v228, s36, v228
        v_lshrrev_b32 v15, 5, v0
        v_lshlrev_b32 v229, 17, v15
        v_and_b32 v15, 3, v14
        v_lshl_add_u32 v229, v15, 8, v229
        v_lshl_add_u32 v229, v13, 4, v229
        v_lshlrev_b32 v230, 7, v15
        v_and_b32 v15, 3, v0
        v_lshl_add_u32 v230, v15, 12, v230
        v_bfe_u32 v15, v0, 2, 1
        v_lshl_add_u32 v230, v15, 9, v230
        v_bfe_u32 v15, v0, 1, 3
        v_lshlrev_b32 v231, 13, v15
        v_and_b32 v15, 1, v0
        v_lshl_add_u32 v231, v15, 7, v231
        s_lshl_b32 s36, s35, 16
        v_add_u32 v231, s36, v231
        s_lshr_b32 s20, s39, 1
        s_lshl_b32 s20, s20, 10
        s_and_b32 s36, s39, 1
        s_lshl_b32 s36, s36, 7
        s_add_u32 s20, s20, s36
        s_lshl_b32 s36, s{sWv}, 20
        s_add_u32 s20, s20, s36
        s_add_u32 s20, s20, {WS_H}
        s_lshr_b32 s21, s2, 5
        s_lshl_b32 s21, s21, 14
        s_lshl_b32 s36, s{sWv}, 10
        s_add_u32 s21, s21, s36
        s_add_u32 s21, s21, {WS_FL + 4}
        s_sub_u32 s22, s{sAr}, {WS_AR}
        s_lshr_b32 s22, s22, 6
        s_add_u32 s22, s22, {WS_FL + 4}
        v_lshlrev_b32 v225, 5, v0
        s_waitcnt vmcnt({4+ne})""") + self.stamp()
        pk = lambda op, d, x, y, n, m="": [f"v_pk_{op}_f32 {v(d+2*i,2)}, {v(x+2*i,2)}, {v(y+2*i,2)} {m}" for i in range(n)]
        pro += pk("add", MPR, MPR, MPR+8, 4) + pk("add", MPR+16, MPR+16, MPR+24, 4) + pk("add", MPR, MPR, MPR+16, 4) + rndn(MPR, 8, MPR+8)
        pro += [f"v_add_f32 {v(MPR+4+e)}, 1.0, {v(MPR+4+e)}" for e in range(4)] + rndn(MPR+4, 4, MPR+8)
        pro += [f"ds_write_b128 v224, {v(MPR,4)}", f"ds_write_b128 v224, {v(MPR+4,4)} offset:4096", f"s_waitcnt vmcnt({ne})"]
        bite = lambda i: [f"s_mov_b32 s36, {i*256*8192}", f"buffer_load_dword {v(vDum)}, v231, {q4(sW)}, s36 offen nt"]
        if wb == 0: pro += w0
        mark = len(pro)
        pro += unpack(X, XR, 16) + ["s_waitcnt lgkmcnt(0)", "s_barrier"]
        pro += [f"ds_read_b128 {v(SA+4*i,4)}, v225 offset:{16*(i&1) + 2048*(i>>1)}" for i in range(8)]
        T = 176
        for r in range(2):
            b = X + 16*r; t = T + 4*r
            pro += [f"v_pk_add_f32 {v(t,2)}, {v(b,2)}, {v(b+2,2)}", f"v_pk_mul_f32 {v(t+2,2)}, {v(b,2)}, {v(b,2)}", f"v_pk_fma_f32 {v(t+2,2)}, {v(b+2,2)}, {v(b+2,2)}, {v(t+2,2)}"]
            for i in range(2, 8): pro += [f"v_pk_add_f32 {v(t,2)}, {v(t,2)}, {v(b+2*i,2)}", f"v_pk_fma_f32 {v(t+2,2)}, {v(b+2*i,2)}, {v(b+2*i,2)}, {v(t+2,2)}"]
        M, Sq = 184, 186
        pro += [f"v_add_f32 {v(M+r)}, {v(T+4*r)}, {v(T+4*r+1)}" for r in range(2)] + [f"v_add_f32 {v(Sq+r)}, {v(T+4*r+2)}, {v(T+4*r+3)}" for r in range(2)]
        pro += allreduce([M, M+1, Sq, Sq+1], [T, T+1, T+2, T+3]) + ln_scalars_n(M, Sq, 2, T) + ["s_waitcnt lgkmcnt(0)"]
        HP = 232
        for r in range(2):
            b = X + 16*r
            pro += [f"v_pk_add_f32 {v(b+2*i,2)}, {v(b+2*i,2)}, {v(M,2)} op_sel:[0,{r}] op_sel_hi:[1,{r}] neg_lo:[0,1] neg_hi:[0,1]" for i in range(8)]
            pro += [f"v_pk_mul_f32 {v(b+2*i,2)}, {v(b+2*i,2)}, {v(Sq,2)} op_sel:[0,{r}] op_sel_hi:[1,{r}]" for i in range(8)]
            hp = (HP, T)[r]
            pro += [f"v_pk_fma_f32 {v(b+2*i,2)}, {v(b+2*i,2)}, {v(AA+2*i,2)}, {v(SA+2*i,2)}" for i in range(8)] + pack(hp, b, 8)
            pro += [f"ds_write_b128 {v(226+r)}, {v(hp,4)}", f"ds_write_b128 {v(226+r)}, {v(hp+4,4)} offset:8192"]
        if wb == 3:
            body = pro[mark:]; pro = pro[:mark]; grp = []
            for n in range(DW + 1): grp += [w0[4*n:4*n+3], w0[4*n+3:4*n+4]]
            step = len(body) // len(grp)
            for k, gq in enumerate(grp): pro += gq + body[k*step:(k+1)*step]
            pro += body[len(grp)*step:]
        pro += ["s_waitcnt lgkmcnt(0)", "s_barrier"] + [f"ds_read_b128 {v(X+4*i,4)}, v228 offset:{1024*i}" for i in range(4)]
        for i in range(4): pro += [f"s_waitcnt lgkmcnt({3-i})", f"buffer_store_dwordx4 {v(X+4*i,4)}, v229, {q4(sWS)}, s20 offen sc1", f"s_add_u32 s20, s20, {2 << 17}"]
        pro += self.stamp()
        nb = self.o.get('bites', 0); late = (w0 if wb == 1 else []) + (bite(1) if nb else [])
        pro += late + ["v_mov_b32 v15, 1", f"s_waitcnt vmcnt({sum('buffer_' in x for x in late)})", f"buffer_store_dword v15, off, {q4(sWS)}, s22 sc1"]
        fl = [f"buffer_load_dword v15, v230, {q4(sWS)}, s21 offen sc1"]
        pro += self.stamp() + (["s_waitcnt vmcnt(0)"] if self.o.get('pw', 0) & 1 else []) + fl
        inl, trc = self.poll(name, fl, ["v_cmp_eq_u32 vcc, 0, v15"])
        q = self.stamp()
        for n in range(D): q += self.hload(n); vm.issue(f"H{n}", 4)
        q += ["s_barrier"] + self.wreads(0)
        for n in range(32):
            extra = {}; ev = 0
            if nb and n in (1, 5): extra[27] = bite(2 + n // 4); ev = 1
            if 24 <= n <= 28:
                b = n - 30; d = self.dmas(True, b + LEAD - 1 >= 0); extra[18] = self.dma_setup(b); ev = len(d)
                for k, x in enumerate(d): extra[19 + 3*k] = [x]
            q += self.qstep(n, vm, extra, ev)
        return pro + inl + q, pro + trc + q
    def attention(self, name):
        mid = self.stamp()
        mid += [f"s_mov_b32 s36, {f2u(math.log2(math.e) / math.sqrt(128.0))}", "s_waitcnt vmcnt(0) lgkmcnt(0)", "s_barrier"]
        mid += self.kreads(-2, VF) + self.kreads(-1, KF)
        mid += self.pack(lambda ks, qb, r: [f"v_accvgpr_write_b32 {a(Q(qb, ks) + i)}, {v(r + i)}" for i in range(4)], lambda qb: "s[36:37]")
        mid += ["v_mov_b32 v13, 0x3f803f80"] + [f"v_accvgpr_write_b32 {a(ONES+i)}, v13" for i in range(4)]
        mid += [f"v_accvgpr_write_b32 {a(LB+i)}, 0" for i in range(16)]
        g = {i: [f"v_mov_b64 {v(OB+4*i,2)}, 0", f"v_mov_b64 {v(OB+4*i+2,2)}, 0"] for i in range(32)}
        g[0] += self.dma_setup(-1)
        for k, d in enumerate(self.dmas()): g[2 + 6 * k].append(d)
        mid += weave(self.qk(0, VF), g, self.sync(-1, True))
        ex = self.exps(0); cv = self.cvts(0); kr = self.kreads(0)
        g = {i: [] for i in range(33)}
        g[0] += self.dma_setup(0)
        for k, d in enumerate(self.dmas()): g[1 + k].append(d)
        for e in range(32): g[min(32, 4 + e)].append(ex[e])
        for k in range(4): g[16 + 2*k].append(kr[k])
        g[32] = kr[4:8] + g[32] + ["s_nop 0"] + cv
        mid += weave(self.qk(1), g, self.sync(0, True))
        mid += [f"s_mov_b32 s{sCnt}, 0", f"s_branch {name}_entry"]
        nb_ = [self.bg(k)[1] for k in range(6)]
        vmx = lambda b: 8 + (sum(nb_[(b - 3 - j) % 6] for j in (1, 2, 3)) if self.o.get('exact', 1) else 0)
        body1 = [f"{name}_loop:"]
        for b in range(3, 7): body1 += self.slot(b, extra=self.bg(b - 3)[0], vm=vmx(b))
        body2 = [f"{name}_entry:"] + self.slot(7, extra=self.bg(4)[0]) + \
                self.slot(8, [f"s_add_u32 s{sCnt}, s{sCnt}, 1", f"s_cmp_lt_u32 s{sCnt}, s{sLim}", f"s_cbranch_scc1 {name}_loop"], extra=self.bg(5)[0], vm=vmx(8))
        mid[-1:-1] = ["s_waitcnt vmcnt(4)"]
        ev0 = [f"s_cmp_eq_u32 s{sLim}, 11", f"s_cbranch_scc1 {name}_exit"]
        ev = ["s_waitcnt lgkmcnt(0)"] + self.stg_reads(0) + [f"v_lshl_add_u32 v15, s{sWv}, 6, v0"] + code_touch(f"{name}_exit", f"(({name}_slow-{name}_exit)>>7)", 15, vDum, 15, sp=38) + (L(f"""s_lshr_b32 s5, s2, 3
        s_lshl_b32 s5, s5, 2
        s_add_u32 s5, s5, s{sWv}
        s_lshr_b32 s6, s5, 6
        s_lshl_b32 s6, s6, 21
        s_and_b32 s5, s5, 63
        s_lshl_b32 s5, s5, 12
        s_add_u32 s5, s5, s6
        s_bfe_u32 s6, s2, 0x10002
        s_lshl_b32 s6, s6, 22
        s_add_u32 s5, s5, s6
        v_and_b32 v13, 31, v0
        v_lshl_add_u32 {v(vBt)}, v13, 7, s5
        s_mov_b32 s78, 18""") if self.o.get('l2w', 1) else [f"v_mov_b32 {v(vBt)}, 0x10000000"]) + [f"s_mov_b32 s{sLim}, 11", f"s_branch {name}_loop"]
        ex_ = [f"{name}_exit:"]
        return mid + body1 + body2 + ev0 + ev + ex_, mid + body2 + body1 + body2 + ev0 + ev + body1 + body2 + ev0 + ex_
    def owd(self, n):
        return [f"s_add_u32 m0, s{sMw}, {(n % 8) * 2 * WBLK}", f"s_add_u32 s{sOffW}, s{sOffW}, {32*2048}"] + \
               [f"buffer_load_dwordx4 {v(6+i)}, {q4(sWO)}, s{sOffW} offen offset:{1056*i} lds" for i in range(4)]
    def obl(self, n): return [f"s_add_u32 s{sOffH}, s{sOffH}, {1 << 17}"] + \
                             [f"buffer_load_dwordx4 {a((n%8)*16+qb*4,4)}, {v(10 if qb < 2 else 11)}, {q4(sWS)}, s{sOffH} offen offset:{1024*(qb&1)} sc1" for qb in range(4)]
    def owr(self, n): return [f"ds_read_b64_tr_b16 {v(SB+(n&1)*32+nb*4+2*tt,2)}, {v(1 + (nb >> 2) + 2*((n >> 2) & 1))} offset:{(n%4)*2*WBLK + 512*tt + 64*((nb>>1)&1) + 8*(nb&1)}" for nb in range(8) for tt in range(2)]
    def transition(self, name):
        D = self.o.get('DO', 5); self.vm = vm = VM()
        setupA = L(f"""s_and_b32 s16, s2, 3
        s_lshl_b32 s16, s16, 2
        s_lshr_b32 s36, s2, 6
        s_add_u32 s16, s16, s36
        s_bfe_u32 s17, s2, 0x40002
        s_and_b32 s37, s{sWv}, 1
        s_lshr_b32 s38, s{sWv}, 1
        s_and_b32 s39, s17, 1
        s_lshl_b32 s19, s39, 1
        s_add_u32 s19, s19, s38
        s_lshl_b32 s18, s16, 2
        s_lshl_b32 s36, s37, 1
        s_add_u32 s18, s18, s36
        s_add_u32 s18, s18, s38
        s_mul_i32 s{sMw}, s38, {WBLK}
        s_mul_i32 s36, s37, 4224
        s_add_u32 s{sMw}, s{sMw}, s36
        v_lshrrev_b32 v14, 4, v0
        s_lshr_b32 s36, s2, 6
        s_lshl_b32 s36, s36, 2
        s_add_u32 s7, s36, s{sWv}
        s_lshl_b32 s36, s7, 7
        s_add_u32 s36, s36, {WS_SILU}
        v_lshlrev_b32 v5, 4, v14
        buffer_load_dwordx4 {a(SI,4)}, v5, {q4(sWS)}, s36 offen
        buffer_load_dwordx4 {a(SI+4,4)}, v5, {q4(sWS)}, s36 offen offset:64""")
        if 1:
            setupA += L(f"""s_lshl_b32 s{sOffW}, s19, 21
            s_lshr_b32 s36, s17, 1
            s_lshl_b32 s36, s36, 8
            s_add_u32 s{sOffW}, s{sOffW}, s36
            s_sub_u32 s{sOffW}, s{sOffW}, {32*2048}
            v_and_b32 v13, 15, v0
            v_lshlrev_b32 v6, 14, v14
            v_lshl_add_u32 v6, v13, 4, v6
            s_lshl_b32 s36, s37, 13
            v_add_u32 v6, s36, v6
            v_add_u32 v7, {2048-1056}, v6
            v_add_u32 v8, {2*(2048-1056)}, v6
            v_add_u32 v9, {3*(2048-1056)}, v6""")
        if self.o.get('ct', 1):
            setupA += [f"v_lshl_add_u32 v15, s{sWv}, 6, v0"] + code_touch(f"{name}_o", f"(({name}_slow-{name}_o)>>7)", 14, vDum, 15, sp=38)
        t = ["s_waitcnt vmcnt(0) lgkmcnt(0)", "s_barrier"] + self.vreads(63)
        ex = self.exps(1); cv = self.cvts(1); vr = self.vreads(64, KF)
        t += ex[:12] + ["s_waitcnt lgkmcnt(0)"]
        mf = self.pv(0); g = {i: [] for i in range(len(mf))}
        for e in range(12, 32): g[e - 12].append(ex[e])
        for k in range(8): g[20 + k] += [vr[2*k], vr[2*k+1]]
        for n in range(16): g[min(len(mf) - 1, 20 + n)].append(cv[n])
        t += weave(mf, g) + ["s_waitcnt lgkmcnt(0)", "s_barrier"]
        g = {}; spread(setupA, g, 0, 35, 2)
        w = []; we = self.o.get('wearly', 0)
        for n in range(D + 1): w += self.owd(n); vm.issue(f"W{n}", 4)
        g.setdefault(35, []).extend(w[:6*we])
        t += weave(self.pv(1, KF), g) + self.stamp()
        t += [f"v_accvgpr_read_b32 {v(vL+2*qb)}, {a(LB+4*qb)}" for qb in range(4)]
        t += L(f"""v_min_f32 v13, {v(vL)}, {v(vL+2)}
        v_min3_f32 v13, v13, {v(vL+4)}, {v(vL+6)}
        v_add_f32 v14, {v(vL)}, {v(vL+2)}
        v_add_f32 v15, {v(vL+4)}, {v(vL+6)}
        v_add_f32 v14, v14, v15
        v_cmp_nle_f32 vcc, {f2u(2.0**-30)}, v13
        s_mov_b64 s[36:37], vcc
        v_cmp_nge_f32 vcc, {f2u(2.0**30)}, v14
        s_mov_b32 s6, 0
        s_or_b64 s[36:37], s[36:37], vcc
        s_cbranch_scc1 {name}_slow
        {name}_ret:""")
        t += [f"v_rcp_f32 {v(vL+2*qb)}, {v(vL+2*qb)}" for qb in range(4)]
        t += [f"s_lshl_b32 s36, s{sRb}, 12", f"s_lshl_b32 s37, s{sHead}, 19", "s_add_u32 s36, s36, s37", f"s_add_u32 s36, s36, {WS_O - (1 << 17)}"]
        def st(sidx, qb, r):
            return ([f"s_add_u32 s36, s36, {1 << 17}"] if qb == 0 else []) + [f"buffer_store_dwordx4 {v(r,4)}, {v(vH)}, {q4(sWS)}, s36 offen offset:{1024*qb} sc1"]
        t += self.pack(st, lambda qb: v(vL + 2*qb, 2))
        t += w[6*we:]
        t += ["s_cmp_lg_u32 s6, 0", f"s_cbranch_scc1 {name}_nostg"] + self.stg_reads(1) + [f"{name}_nostg:"]
        t += L(f"""v_bfe_u32 v15, v0, 2, 3
        v_mul_u32_u24 v1, 1056, v15
        v_lshrrev_b32 v15, 5, v0
        v_lshl_add_u32 v1, v15, 8, v1
        v_and_b32 v15, 3, v0
        v_lshl_add_u32 v1, v15, 4, v1
        s_and_b32 s38, s19, 1
        s_mul_i32 s36, s38, {WBLK}
        s_and_b32 s37, s17, 1
        s_lshl_b32 s37, s37, 7
        s_add_u32 s39, s36, s37
        s_xor_b32 s37, s37, 128
        s_add_u32 s36, s36, s37
        v_add_u32 v2, s36, v1
        v_add_u32 v1, s39, v1
        v_add_u32 v3, {8*WBLK}, v1
        v_add_u32 v4, {8*WBLK}, v2
        s_lshl_b32 s36, s38, 11
        v_add_u32 v10, s36, {v(vH)}
        v_xor_b32 v11, 2048, v10
        s_lshr_b32 s36, s18, 1
        s_lshl_b32 s{sOffH}, s36, 12
        s_lshl_b32 s37, s19, 22
        s_add_u32 s{sOffH}, s{sOffH}, s37
        s_add_u32 s{sOffH}, s{sOffH}, {WS_O - (1 << 17)}
        s_lshr_b32 s39, s36, 2
        s_lshl_b32 s39, s39, 14
        s_and_b32 s37, s36, 3
        s_lshl_b32 s37, s37, 7
        s_add_u32 s39, s39, s37
        s_lshl_b32 s37, s19, 10
        s_add_u32 s39, s39, s37
        s_add_u32 s39, s39, {WS_FL}
        v_and_b32 v13, 3, v0
        v_lshlrev_b32 v13, 12, v13
        v_bfe_u32 v14, v0, 2, 1
        v_lshl_add_u32 v13, v14, 9, v13
        s_sub_u32 s36, s{sAr}, {WS_AR}
        s_lshr_b32 s36, s36, 6
        s_add_u32 s36, s36, {WS_FL}
        v_mov_b32 v14, 0
        v_mov_b32 v15, 1""")
        t += [f"v_mov_b64 {v(OB+2*i,2)}, 0" for i in range(64)]
        t += [f"s_waitcnt vmcnt({4*(D+1-we)}) lgkmcnt(0)", f"buffer_store_dword v15, v14, {q4(sWS)}, s36 offen sc1"]
        fl = [f"buffer_load_dword v15, v13, {q4(sWS)}, s39 offen sc1"]
        t += ["s_nop 0"] + fl + self.stamp()
        t += [f"{MF} {v(PB+4*nb,4)}, {a(WM+16*kk+4*nb,4)}, {a(SI+4*kk,4)}, {v(PB+4*nb,4) if kk else 0}" for kk in range(2) for nb in range(4)]
        t += L(f"""s_lshl_b32 s36, s7, 14
        s_and_b32 s37, s2, 63
        s_lshl_b32 s37, s37, 8
        s_add_u32 s36, s36, s37
        s_add_u32 s36, s36, {WS_MP2}
        s_mov_b32 exec_lo, 0x00010001
        s_mov_b32 exec_hi, 0x00010001
        s_nop 1""")
        t += [f"buffer_store_dwordx4 {v(PB+4*nb,4)}, v5, {q4(sWS)}, s36 offen offset:{64*nb} sc1" for nb in range(4)] + ["s_mov_b64 exec, -1"]
        inl, tr = self.poll(name, fl, ["v_cmp_eq_u32 vcc, 0, v15"], vm=4)
        t2 = self.stamp()
        for n in range(D): t2 += self.obl(n); vm.issue(f"B{n}", 4)
        t2 += ["s_barrier"] + self.owr(0) + [f"{name}_o:"]
        return t + inl + t2, t + tr + t2
    def ostep(self, n, extra=None, extra_vm=(), need=()):
        D = self.o.get('DO', 5); vm = self.vm
        mf = [f"{MF} {v(A(qb,nb),4)}, {v(SB+(n&1)*32+nb*4,4)}, {a((n%8)*16+qb*4,4)}, {v(A(qb,nb),4)}" for nb in range(8) for qb in range(4)]
        cnt = vm.need(f"B{n}", f"W{min(n+1,31)}", *need)
        g = {i: [] for i in range(32)}
        if n + D <= 31:
            b = self.obl(n + D); g[1] += [b[0]]
            for k in range(4): g[3 + 4*k].append(b[1+k])
            vm.issue(f"B{n+D}", 4)
        if n + D + 1 <= 31:
            w = self.owd(n + D + 1); g[0] += w[0:2]
            for k in range(4): g[19 + 3*k].append(w[2+k])
            vm.issue(f"W{n+D+1}", 4)
        for t in extra_vm: vm.issue(t)
        if n < 31:
            r = self.owr(n + 1)
            for k in range(8): g[2 + 2*k] += r[2*k:2*k+2]
        if extra:
            for k, e in extra.items(): g[k] += e
        return weave(mf, g, [f"s_waitcnt vmcnt({cnt}) lgkmcnt(0)"] + (["s_barrier"] if n < 31 else []))
    def oproj(self, name):
        D = self.o.get('DO', 5)
        XR, WR, MP = 208, 224, 232
        su = L(f"""v_and_b32 v15, 15, v0
        v_lshl_add_u32 v13, v15, 11, v5
        v_lshlrev_b32 v14, 10, v5
        v_lshl_add_u32 v14, v15, 4, v14
        s_lshl_b32 s20, s18, 16
        s_lshl_b32 s22, s17, 7
        s_add_u32 s20, s20, s22
        s_add_u32 s21, s20, 32768
        s_lshl_b32 s23, s{sWv}, 12
        s_lshl_b32 s36, s17, 8
        s_add_u32 s23, s23, s36
        s_add_u32 s36, s23, {WS_MP2}
        s_add_u32 s37, s23, {WS_MP2 + 65536}
        s_add_u32 s38, s23, {WS_MP2 + 131072}
        s_add_u32 s39, s23, {WS_MP2 + 196608}
        s_sub_u32 s23, s{sAr}, {WS_AR}
        s_lshr_b32 s23, s23, 6
        s_xor_b32 s23, s23, 2048
        s_add_u32 s23, s23, {WS_FL}""")
        mpl = [f"buffer_load_dwordx4 {v(MP+4*i,4)}, v14, {q4(sWS)}, s{36+i} offen sc1" for i in range(4)] + [f"buffer_load_dword v248, off, {q4(sWS)}, s23 sc1"]
        el = mpl + [f"buffer_load_dwordx4 {v(WR+4*sx,4)}, v5, {q4(sWR)}, s22 offen offset:{64*sx}" for sx in range(2)]
        el += [f"buffer_load_dwordx4 {v(XR+(q*2+sx)*4,4)}, v13, {q4(sX)}, s{20+q} offen offset:{64*sx}" for q in range(2) for sx in range(2)]
        dsu = L(f"""s_and_b32 s5, s2, 7
        s_mul_i32 s5, s5, 28
        s_lshr_b32 s6, s2, 3
        s_add_u32 s5, s5, s6
        s_lshl_b32 s5, s5, 15
        s_lshl_b32 s6, s{sWv}, 9
        s_add_u32 s5, s5, s6
        s_cmp_ge_u32 s2, 224
        s_cselect_b32 s5, 0x10000000, s5
        s_lshl_b32 s6, s{sWv}, 13
        s_add_u32 s6, s6, {LDN}
        v_lshrrev_b32 v6, 5, v0
        v_lshlrev_b32 v6, 11, v6
        v_and_b32 v7, 31, v0
        v_lshl_add_u32 v6, v7, 4, v6""")
        dd = [[f"s_add_u32 m0, s6, {1024*i}", "s_nop 0", f"buffer_load_dwordx4 v6, {q4(sWD)}, s5 offen lds {self.o.get('ntd','nt')}", "s_add_u32 s5, s5, 4096"] for i in range(8)]
        mv = [f"v_add_f32 {v(MP+e)}, {v(MP+e)}, {v(MP+4+e)}" for e in range(4)] + [f"v_add_f32 {v(MP+8+e)}, {v(MP+8+e)}, {v(MP+12+e)}" for e in range(4)]
        mv += [f"v_add_f32 {v(MP+e)}, {v(MP+e)}, {v(MP+8+e)}" for e in range(4)] + allreduce([MP, MP+1, MP+2, MP+3], [MP+4, MP+5, MP+6, MP+7], lo=16)
        mv += rndn(MP, 4, MP+4) + [f"s_cmp_eq_u32 s{sWv}, 2", "s_cselect_b32 s36, 1.0, 0"] + [f"v_add_f32 {v(MP+e)}, s36, {v(MP+e)}" for e in range(4)] + rndn(MP, 4, MP+4)
        mv += [f"s_lshl_b32 s36, s{sWv}, 8", f"s_add_u32 s36, s36, {LV}", "v_lshl_add_u32 v7, v15, 4, s36", f"ds_write_b128 v7, {v(MP,4)}"]
        t = []; tr = []; e0 = 32 - D
        assert e0 <= 28
        for n in range(32):
            extra = {}; evm = []; need = ()
            if n == e0 - 1: spread(su, extra, 18, 31, 2)
            if n == e0:
                for i, e in enumerate(el): extra[1 + 2*i] = [e]
                evm = ["EL"] * 11
            if n == 28: spread(dsu, extra, 20, 31, 2)
            if n == 29:
                for i in range(8): extra[3 + 3*i] = dd[i]
                evm = ["DN"] * 8
            if n == 31: spread(mv, extra, 0, 31, 2)
            if n == 31:
                inl, trc = self.poll(name, mpl, ["v_subrev_u32 v248, 1, v248", "v_mov_b32 v249, 0"] + anysent(MP, 18, 8, 9), vm=8)
                t += inl; tr += trc
            x = self.ostep(n, extra, evm, need); t += x; tr += x
        st = self.stamp()
        return t + st, tr + st
    def tail(self, name):
        XR, WR = 208, 224
        GA, SBv, CB, GB = 144, 160, 176, 192
        SND, RCV = 192, 232
        K, XF, WF32, U = OB, 48, 80, 112
        t = []; tr = []
        def add(x): t.extend(x); tr.extend(x)
        def addp(p): t.extend(p[0]); tr.extend(p[1])
        add(L(f"""s_lshl_b32 s36, s{sWv}, 14
        v_add_u32 v7, s36, {v(vH)}
        v_xor_b32 v8, 32768, v7
        s_xor_b32 s37, s{sAr}, {4 << 15}
        s_barrier"""))
        order = [(q, nb) for half in (1, 0) for q in range(2) for nb in range(4*half, 4*half + 4)]
        add([f"ds_write_b128 v7, {v(A(2+q,nb),4)} offset:{1024*(q*8+nb)}" for q, nb in order] + ["s_waitcnt lgkmcnt(0)", "s_barrier"])
        add([f"ds_read_b128 {v(A(2+q,nb),4)}, v8 offset:{1024*(q*8+nb)}" for q, nb in order[:12]])
        add(["v_lshlrev_b32 v9, 1, v5", f"v_add_u32 v9, {LV}, v9", "s_waitcnt lgkmcnt(4)"])
        add([f"ds_read_b128 {v(A(2+q,nb),4)}, v8 offset:{1024*(q*8+nb)}" for q, nb in order[12:]])
        for q in range(2):
            b = A(q, 4)
            add([f"v_pk_add_f32 {v(b+2*i,2)}, {v(b+2*i,2)}, {v(b+64+2*i,2)}" for i in range(8)] + pack(SND + 8*q, b, 8))
            add([f"buffer_store_dwordx4 {v(SND+8*q+4*i,4)}, {v(vH)}, {q4(sWS)}, s37 offen offset:{1024*(2*q+i)} sc1" for i in range(2)])
        xl = [f"buffer_load_dwordx4 {v(RCV+4*i,4)}, {v(vH)}, {q4(sWS)}, s{sAr} offen offset:{1024*i} sc1" for i in range(4)]
        add(["s_waitcnt lgkmcnt(0)"])
        for vec in range(3): add([f"ds_read_b128 {v(GA+16*vec+4*k,4)}, v9 offset:{256*vec+128*(k>>1)+16*(k&1)}" for k in range(4)])
        add([f"v_pk_add_f32 {v(K+2*i,2)}, {v(K+2*i,2)}, {v(K+64+2*i,2)}" for i in range(8)])
        add([f"v_pk_add_f32 {v(K+16+2*i,2)}, {v(K+32+2*i,2)}, {v(K+96+2*i,2)}" for i in range(8)])
        add(([] if self.o.get('pw', 0) & 4 else xl) + unpack(XF, XR, 16) + unpack(WF32, WR, 8) + ["s_waitcnt lgkmcnt(0)"])
        add([f"ds_read_b128 {v(GB+4*k,4)}, v9 offset:{768+128*(k>>1)+16*(k&1)}" for k in range(4)])
        add([f"v_pk_fma_f32 {v(K+2*i,2)}, {v(K+2*i,2)}, {v(GA+(2*i&15),2)}, {v(XF+2*i,2)}" for i in range(16)])
        R = 208
        add([f"v_mul_f32 {v(R+7)}, {v(SBv)}, {v(WF32)}"] + [f"v_fmac_f32 {v(R+7)}, {v(SBv+i)}, {v(WF32+i)}" for i in range(1, 16)])
        add([f"v_pk_mul_f32 {v(WF32+2*i,2)}, {v(CB+2*i,2)}, {v(WF32+2*i,2)}" for i in range(8)])
        add([f"v_add_f32 {v(R+3)}, {v(WF32)}, {v(WF32+1)}"] + [f"v_add_f32 {v(R+3)}, {v(R+3)}, {v(WF32+i)}" for i in range(2, 16)])
        add(L(f"""s_lshl_b32 s36, s18, 13
        s_add_u32 s36, s36, {WS_ST}
        s_add_u32 s37, s36, 4096
        s_lshl_b32 s38, s17, 9
        s_add_u32 s38, s38, s36
        v_lshlrev_b32 v7, 3, v0"""))
        if self.o.get('pw', 0) & 4: add(["s_waitcnt vmcnt(0)"] + xl)
        addp(self.poll(name, xl, anysent(RCV, 16, 8, 9)))
        add(self.stamp())
        add(unpack(U, RCV, 16) + [f"v_pk_fma_f32 {v(K+2*i,2)}, {v(U+2*i,2)}, {v(GA+(2*i&15),2)}, {v(K+2*i,2)}" for i in range(16)] + rndn(K, 32, 96))
        for q in range(2):
            b = K + 16*q; r = 112 + 6*q
            add([f"v_pk_add_f32 {v(r,2)}, {v(b,2)}, {v(b+2,2)}", f"v_pk_mul_f32 {v(r+2,2)}, {v(b,2)}, {v(b,2)}", f"v_pk_mul_f32 {v(r+4,2)}, {v(b,2)}, {v(WF32,2)}"])
            for i in range(1, 8):
                if i > 1: add([f"v_pk_add_f32 {v(r,2)}, {v(r,2)}, {v(b+2*i,2)}"])
                add([f"v_pk_fma_f32 {v(r+2,2)}, {v(b+2*i,2)}, {v(b+2*i,2)}, {v(r+2,2)}", f"v_pk_fma_f32 {v(r+4,2)}, {v(b+2*i,2)}, {v(WF32+2*i,2)}, {v(r+4,2)}"])
            add([f"v_add_f32 {v(R+4*q+k)}, {v(r+2*k)}, {v(r+2*k+1)}" for k in range(3)])
        add(["s_nop 1"])
        for r in (R, R+4): add([f"v_permlane32_swap_b32 {v(r)}, {v(r+2)}", f"v_permlane32_swap_b32 {v(r+1)}, {v(r+3)}"])
        for r in (R, R+4): add([f"v_add_f32 {v(r)}, {v(r)}, {v(r+2)}", f"v_add_f32 {v(r+1)}, {v(r+1)}, {v(r+3)}"])
        add(["s_nop 1"] + [f"v_permlane16_swap_b32 {v(r)}, {v(r+1)}" for r in (R, R+4)] + [f"v_add_f32 {v(R)}, {v(R)}, {v(R+1)}", f"v_add_f32 {v(R+1)}, {v(R+4)}, {v(R+5)}"])
        SL = 48
        sl = [f"buffer_load_dwordx2 {v(SL+2*i,2)}, v7, {q4(sWS)}, s{36+(i>>3)} offen offset:{512*(i&7)} sc1" for i in range(16)]
        add([f"buffer_store_dwordx2 {v(R,2)}, v7, {q4(sWS)}, s38 offen sc1"] + ([] if self.o.get('pw', 0) & 8 else sl))
        add(L(f"""v_lshrrev_b32 v8, 2, v0
        v_lshlrev_b32 v8, 9, v8
        v_and_b32 v9, 3, v0
        v_lshl_add_u32 v8, v9, 3, v8
        v_add_u32 v8, s6, v8"""))
        dn = [f"ds_read_b64_tr_b16 {a(WM+2*i,2)}, v8 offset:{32*i}" for i in range(16)]
        add(dn[:8] + ["s_waitcnt lgkmcnt(4)"] + dn[8:])
        add(L(f"""s_lshl_b32 s39, s18, 5
        s_sub_u32 s39, 2047, s39
        v_sub_u32 v10, s39, v15
        v_subrev_u32 v11, 16, v10"""))
        if self.o.get('pw', 0) & 8: add(["s_waitcnt vmcnt(0)"] + sl)
        addp(self.poll(name, sl, anysent(SL, 32, 8, 9)))
        add(self.stamp())
        for w in (16, 8, 4, 2): add([f"v_pk_add_f32 {v(SL+2*i,2)}, {v(SL+2*i,2)}, {v(SL+w+2*i,2)}" for i in range(w // 2)])
        M, Sq, S3, TC = SL, SL + 2, SL + 4, SL + 6
        add([f"v_mov_b64 {v(S3,2)}, {v(M,2)}", "s_nop 1", f"v_permlane32_swap_b32 {v(M)}, {v(S3)}", f"v_permlane32_swap_b32 {v(M+1)}, {v(S3+1)}",
             f"v_mov_b64 {v(Sq,2)}, {v(M,2)}", f"v_mov_b64 {v(TC,2)}, {v(S3,2)}", "s_nop 0"])
        add([f"v_permlane16_swap_b32 {v(x+i)}, {v(y+i)}" for x, y in ((M, Sq), (S3, TC)) for i in range(2)])
        add(ln_scalars_n(M, Sq, 2, 8))
        add([f"v_fma_f32 {v(S3+i)}, -{v(M+i)}, {v(TC)}, {v(S3+i)}" for i in range(2)] + [f"v_fma_f32 {v(S3+i)}, {v(S3+i)}, {v(Sq+i)}, {v(TC+1)}" for i in range(2)])
        for i in range(2):
            add([f"v_ashrrev_i32 v8, 31, {v(S3+i)}", "v_or_b32 v8, 0x80000000, v8", f"v_xor_b32 v8, {v(S3+i)}, v8", "v_and_b32 v8, 0xfffff800, v8", f"v_or_b32 {v(10+i)}, v8, {v(10+i)}"])
        T1 = 248
        mrg = [f"v_max_u32 {v(T1+1)}, {v(T1+1)}, {v(T1+3)}", f"v_med3_u32 {v(T1+1)}, {v(T1)}, {v(T1+2)}, {v(T1+1)}", f"v_max_u32 {v(T1)}, {v(T1)}, {v(T1+2)}"]
        dppm = []
        for sh in (8, 4, 2, 1): dppm += ["s_nop 1", f"v_mov_b32_dpp {v(T1+2)}, {v(T1)} row_ror:{sh} {DPP}", f"v_mov_b32_dpp {v(T1+3)}, {v(T1+1)} row_ror:{sh} {DPP}"] + mrg
        add([f"v_max_u32 {v(T1)}, v10, v11", f"v_min_u32 {v(T1+1)}, v10, v11"] + dppm)
        add(L(f"""s_cmp_lg_u32 s17, 0
        s_cbranch_scc1 {name}_nokey
        s_lshl_b32 s36, s18, 7
        s_add_u32 s36, s36, {WS_KEY}
        v_mov_b32 v8, 0
        buffer_store_dwordx2 {v(T1,2)}, v8, {q4(sWS)}, s36 offen sc1
        {name}_nokey:"""))
        H, HP = 64, 96
        for q in range(2):
            add([f"v_pk_add_f32 {v(H+16*q+2*i,2)}, {v(K+16*q+2*i,2)}, {v(M,2)} op_sel:[0,{q}] op_sel_hi:[1,{q}] neg_lo:[0,1] neg_hi:[0,1]" for i in range(8)])
            add([f"v_pk_mul_f32 {v(H+16*q+2*i,2)}, {v(H+16*q+2*i,2)}, {v(Sq,2)} op_sel:[0,{q}] op_sel_hi:[1,{q}]" for i in range(8)])
            add([f"v_pk_fma_f32 {v(H+16*q+2*i,2)}, {v(H+16*q+2*i,2)}, {v(CB+2*i,2)}, {v(SBv+2*i,2)}" for i in range(8)] + pack(HP + 8*q, H + 16*q, 8))
        add([f"s_add_u32 s36, s{sAr}, 6144", "v_add_u32 v9, 128, v5"])
        for q in range(2):
            add(L(f"""v_cmp_eq_u32 s[38:39], {v(10+q)}, {v(T1)}
            v_cmp_eq_u32 vcc, {v(10+q)}, {v(T1+1)}
            s_nop 1
            v_cndmask_b32 v8, v5, v9, vcc
            s_or_b64 exec, s[38:39], vcc
            s_cbranch_execz {name}_nc{q}
            buffer_store_dwordx4 {v(HP+8*q,4)}, v8, {q4(sWS)}, s36 offen sc1
            buffer_store_dwordx4 {v(HP+8*q+4,4)}, v8, {q4(sWS)}, s36 offen offset:64 sc1
            {name}_nc{q}:
            s_mov_b64 exec, -1"""))
        kl = [f"buffer_load_dwordx2 {v(T1,2)}, v7, {q4(sWS)}, s37 offen sc1"]
        add([f"s_mov_b32 s37, {WS_KEY}", "v_lshlrev_b32 v7, 7, v0"] + kl + unpack(H, HP, 16) + ["s_waitcnt lgkmcnt(0)"])
        OP = 208
        add([f"v_pk_mul_f32 {v(U+2*i,2)}, {v(H+2*i,2)}, {v(GB+(2*i&15),2)}" for i in range(16)] + rndn(U, 32, OP))
        add([f"v_pk_add_f32 {v(U+2*i,2)}, {v(U+2*i,2)}, {v(K+2*i,2)}" for i in range(16)] + pack(OP, U, 16))
        addp(self.poll(name, kl, anysent(T1, 2, 8, 9)))
        add(self.stamp())
        add(dppm)
        for pl in ("v_permlane16_swap_b32", "v_permlane32_swap_b32"):
            add([f"v_mov_b64 {v(T1+2,2)}, {v(T1,2)}", "s_nop 1", f"{pl} {v(T1)}, {v(T1+2)}", f"{pl} {v(T1+1)}, {v(T1+3)}"] + mrg)
        ost = [f"buffer_store_dwordx4 {v(OP+(q*2+sx)*4,4)}, v13, {q4(sOUT)}, s{20+q} offen offset:{64*sx}" for q in range(2) for sx in range(2)]
        add(L(f"""s_nop 0
        v_readfirstlane_b32 s9, {v(T1+1)}
        v_readfirstlane_b32 s8, {v(T1)}
        s_andn2_b32 s11, 2047, s9
        s_andn2_b32 s10, 2047, s8
        s_cmp_ge_u32 s2, 224
        s_cbranch_scc1 {name}_nomoe"""))
        for i in range(2):
            add(L(f"""s_lshr_b32 s36, s{10+i}, 9
            s_bfe_u32 s37, s{10+i}, 0x20007
            s_lshl_b32 s37, s37, 6
            s_add_u32 s36, s36, s37
            s_lshl_b32 s36, s36, 2
            s_bfe_u32 s37, s{10+i}, 0x10006
            s_add_u32 s36, s36, s37
            s_bfe_u32 s37, s{10+i}, 0x10005
            s_lshl_b32 s37, s37, 1
            s_add_u32 s36, s36, s37
            s_lshl_b32 s{12+i}, s36, 13"""))
        add(L(f"""s_cmp_eq_u32 s12, s13
        s_cselect_b32 s36, 128, 0
        s_add_u32 s13, s13, s36
        v_and_b32 v8, 1, v0
        v_cmp_eq_u32 vcc, 1, v8
        v_mov_b32 v9, s12
        v_mov_b32 v6, s13
        v_cndmask_b32 v6, v9, v6, vcc
        v_add_u32 v6, v6, v5
        s_lshl_b32 s36, s{sWv}, 19
        s_add_u32 s36, s36, {WS_AR + 6144}
        s_add_u32 s37, s36, {1 << 17}
        s_add_u32 s38, s36, {2 << 17}
        s_add_u32 s39, s36, {3 << 17}"""))
        BX = 112
        bl = [f"buffer_load_dwordx4 {v(BX+4*ks,4)}, v6, {q4(sWS)}, s{36+(ks>>1)} offen offset:{64*(ks&1)} sc1" for ks in range(8)]
        add(bl + L(f"""s_lshl_b32 s5, s{sWv}, 11
        v_add_u32 v1, s5, {v(vH)}
        v_lshlrev_b32 v2, 10, v8
        v_bfe_u32 v3, v0, 1, 3
        v_lshl_add_u32 v2, v3, 6, v2
        v_add_u32 v2, v2, v5"""))
        addp(self.poll(name, bl, anysent(BX, 32, 8, 9)))
        add(self.stamp())
        add(ost)
        GD = 224
        add([f"{MF} {v(GD+4*m,4)}, {a(GU+(ks*2+m)*4,4)}, {v(BX+4*ks,4)}, {v(GD+4*m,4) if ks else 0}" for ks in range(8) for m in range(2)])
        add(["s_nop 6", f"ds_write_b128 v1, {v(GD,4)}", f"ds_write_b128 v1, {v(GD+4,4)} offset:1024", "s_waitcnt lgkmcnt(0)", "s_barrier"])
        add([f"ds_read_b128 {v(BX+4*i,4)}, {v(vH)} offset:{1024*i}" for i in range(8)])
        add(["s_waitcnt lgkmcnt(4)"] + [f"v_pk_add_f32 {v(BX+2*i,2)}, {v(BX+2*i,2)}, {v(BX+8+2*i,2)}" for i in range(4)])
        add(["s_waitcnt lgkmcnt(0)"] + [f"v_pk_add_f32 {v(BX+16+2*i,2)}, {v(BX+16+2*i,2)}, {v(BX+24+2*i,2)}" for i in range(4)])
        add([f"v_pk_add_f32 {v(BX+2*i,2)}, {v(BX+2*i,2)}, {v(BX+16+2*i,2)}" for i in range(4)])
        add(rndn(BX, 8, BX+8) + silu(BX, 4, BX+8) + rndn(BX, 4, BX+8) + [f"v_mul_f32 {v(BX+i)}, {v(BX+i)}, {v(BX+4+i)}" for i in range(4)] + pack(BX + 8, BX, 2))
        for i in range(8):
            m = 0x00030003 << (2 * i)
            add([f"s_mov_b32 vcc_lo, {m:#x}", f"s_mov_b32 vcc_hi, {m:#x}", f"v_cndmask_b32 {v(BX+12+2*i)}, 0, {v(BX+8)}, vcc", f"v_cndmask_b32 {v(BX+13+2*i)}, 0, {v(BX+9)}, vcc"])
        add([f"s_add_u32 s36, s{sAr}, 4096"])
        add([f"v_mfma_f32_16x16x16_bf16 {v(GD+4*h,4)}, {a(WM+2*(8*h+i),2)}, {v(BX+12+2*i,2)}, {v(GD+4*h,4) if i else 0}" for i in range(8) for h in range(2)])
        add(["s_nop 6", f"buffer_store_dwordx4 {v(GD,4)}, v2, {q4(sWS)}, s36 offen sc1", f"buffer_store_dwordx4 {v(GD+4,4)}, v2, {q4(sWS)}, s36 offen offset:512 sc1"])
        add([f"s_branch {name}_moed", f"{name}_nomoe:"] + ost + [f"{name}_moed:"] + self.stamp())
        YL = 96
        XS, HS = 208, 224
        add(L(f"""s_mov_b32 s14, 0
        v_lshlrev_b32 v6, 11, v5
        v_lshl_add_u32 v6, v15, 4, v6
        {name}_sel:
        s_lshr_b32 s36, s10, 7
        s_cmp_lg_u32 s36, s16
        s_cbranch_scc1 {name}_next
        s_mul_i32 s15, s{sWv}, {56*32768}
        s_lshr_b32 s36, s17, 2
        s_lshl_b32 s36, s36, 13
        s_add_u32 s15, s15, s36
        s_and_b32 s36, s17, 3
        s_lshl_b32 s36, s36, 8
        s_add_u32 s15, s15, s36
        s_lshl_b32 s36, s14, 10
        s_add_u32 s15, s15, s36
        s_add_u32 s15, s15, {WS_AR + 4096}"""))
        yl = ["s_mov_b32 s36, s15"]
        for i in range(14): yl += [f"buffer_load_dwordx4 {v(YL+4*i,4)}, v6, {q4(sWS)}, s36 offen sc1", "s_add_u32 s36, s36, 131072"]
        add(([] if self.o.get('pw', 0) & 16 else yl) + L(f"""s_bitcmp1_b32 s10, 4
        s_cselect_b64 vcc, -1, 0
        s_cselect_b32 s12, s21, s20
        s_and_b32 s37, s8, 0xfffff800
        s_ashr_i32 s38, s37, 31
        s_not_b32 s38, s38
        s_or_b32 s38, s38, 0x80000000
        s_xor_b32 s37, s37, s38
        v_mov_b32 v4, s37"""))
        add([f"v_cndmask_b32 {v(XS+i)}, {v(K+i)}, {v(K+16+i)}, vcc" for i in range(16)] + [f"v_cndmask_b32 {v(HS+i)}, {v(H+i)}, {v(H+16+i)}, vcc" for i in range(16)])
        add(["v_cndmask_b32 v3, v10, v11, vcc"] + rnd1(4) + L(f"""v_mul_f32 v4, {f2u(-math.log2(math.e))}, v4
        v_exp_f32 v4, v4
        s_lshl_b32 s37, s14, 10
        v_add_f32 v4, 1.0, v4
        v_rcp_f32 v4, v4
        s_add_u32 s37, s37, 16384""") + rnd1(4) + L(f"""
        s_lshl_b32 s38, s{sWv}, 8
        s_add_u32 s38, s38, s37
        v_lshl_add_u32 v1, v15, 4, s38
        v_lshl_add_u32 v2, v5, 1, s37"""))
        if self.o.get('pw', 0) & 16: add(["s_waitcnt vmcnt(0)"] + yl)
        addp(self.poll(name, yl, anysent(YL, 56, 8, 9)))
        add([f"v_pk_add_f32 {v(YL+2*i,2)}, {v(YL+2*i,2)}, {v(YL+28+2*i,2)}" for i in range(14)])
        add([f"v_pk_add_f32 {v(YL+2*i,2)}, {v(YL+2*i,2)}, {v(YL+16+2*i,2)}" for i in range(6)])
        add([f"v_pk_add_f32 {v(YL+2*i,2)}, {v(YL+2*i,2)}, {v(YL+8+2*i,2)}" for i in range(4)])
        add([f"v_pk_add_f32 {v(YL+2*i,2)}, {v(YL+2*i,2)}, {v(YL+4+2*i,2)}" for i in range(2)])
        add(allreduce([YL, YL+1, YL+2, YL+3], [YL+4, YL+5, YL+6, YL+7], lo=16))
        add([f"ds_write_b128 v1, {v(YL,4)}", "s_waitcnt lgkmcnt(0)", "s_barrier", "v_cmp_eq_u32 vcc, s8, v3", "s_and_b64 exec, exec, vcc", f"s_cbranch_execz {name}_nown"])
        rd = [f"ds_read_b128 {v(YL+16*w+4*k,4)}, v2 offset:{256*w+128*(k>>1)+16*(k&1)}" for w in range(4) for k in range(4)]
        add(rd[:12] + ["s_waitcnt lgkmcnt(4)"] + rd[12:] + [f"v_pk_add_f32 {v(YL+2*i,2)}, {v(YL+2*i,2)}, {v(YL+16+2*i,2)}" for i in range(8)])
        add(["s_waitcnt lgkmcnt(0)"] + [f"v_pk_add_f32 {v(YL+32+2*i,2)}, {v(YL+32+2*i,2)}, {v(YL+48+2*i,2)}" for i in range(8)])
        add([f"v_pk_add_f32 {v(YL+2*i,2)}, {v(YL+2*i,2)}, {v(YL+32+2*i,2)}" for i in range(8)] + rndn(YL, 16, YL+16))
        add([f"v_pk_mul_f32 {v(YL+2*i,2)}, {v(YL+2*i,2)}, v[4:5] op_sel_hi:[1,0]" for i in range(8)] + rndn(YL, 16, YL+16))
        add([f"v_pk_add_f32 {v(YL+2*i,2)}, {v(YL+2*i,2)}, {v(HS+2*i,2)}" for i in range(8)] + rndn(YL, 16, YL+16))
        add([f"v_pk_mul_f32 {v(YL+2*i,2)}, {v(YL+2*i,2)}, {v(GB+2*i,2)}" for i in range(8)] + rndn(YL, 16, YL+16))
        add([f"v_pk_add_f32 {v(YL+2*i,2)}, {v(YL+2*i,2)}, {v(XS+2*i,2)}" for i in range(8)] + pack(YL+16, YL, 8))
        add([f"buffer_store_dwordx4 {v(YL+16+4*sx,4)}, v13, {q4(sOUT)}, s12 offen offset:{64*sx}" for sx in range(2)])
        add(L(f"""{name}_nown:
        s_mov_b64 exec, -1
        {name}_next:
        s_mov_b32 s8, s9
        s_mov_b32 s10, s11
        s_add_u32 s14, s14, 1
        s_cmp_lt_u32 s14, 2
        s_cbranch_scc1 {name}_sel"""))
        if self.stamps:
            add(["s_waitcnt vmcnt(0)"] + self.stamp() + [f"s_add_u32 s68, s68, {WS_TIME}", "s_addc_u32 s69, s69, 0", "s_lshl_b32 s36, s2, 2", f"s_add_u32 s36, s36, s{sWv}",
                 "s_lshl_b32 s36, s36, 7", "v_lshl_add_u32 v13, v0, 2, s36", "s_mov_b32 exec_hi, 0", "global_store_dword v13, v255, s[68:69]"])
        add([f"{name}_end:", "s_endpgm"])
        return t, tr
    def slow(self, name):
        NG = PB + 16; MX = vL
        o = [f"{name}_slow:", "s_waitcnt vmcnt(0) lgkmcnt(0)"] + self.stg_reads(1) + L(f"""s_mov_b32 s6, 1
        v_and_b32 v13, 15, v0
        v_lshlrev_b32 v1, 8, v13
        v_add_u32 v1, v1, v5
        v_add_u32 v1, {BIAS}, v1
        v_add_u32 v3, 4096, v1
        v_lshlrev_b32 v2, 7, v5
        v_lshl_add_u32 v2, v13, 4, v2
        v_add_u32 v2, {BIAS + 3*8192}, v2
        v_bfe_u32 v13, v0, 2, 3
        v_mul_u32_u24 v4, 1056, v13
        v_lshrrev_b32 v13, 5, v0
        v_lshl_add_u32 v4, v13, 8, v4
        v_and_b32 v13, 3, v0
        v_lshl_add_u32 v4, v13, 3, v4
        v_add_u32 v4, s5, v4
        s_mov_b32 s{sOffKV}, 0
        s_waitcnt lgkmcnt(0)""") + [f"v_mov_b32 {v(MX+i)}, 0xff800000" for i in range(4)]
        kl = [f"buffer_load_dwordx4 {a(KF+(t*4+ks)*4,4)}, {v(1+2*t)}, {q4(sK)}, s{sOffKV} offen offset:{64*ks}" for t in range(2) for ks in range(4)]
        p1 = [f"{name}_s1:"] + kl + ["s_waitcnt vmcnt(0)"] + self.qk(0) + ["s_nop 7"]
        for qb in range(4):
            p1 += [f"v_max3_f32 {v(MX+qb)}, {v(MX+qb)}, {v(SB+8*qb+2*i)}, {v(SB+8*qb+2*i+1)}" for i in range(4)]
        p1 += [f"s_add_u32 s{sOffKV}, s{sOffKV}, 8192", f"s_cmp_lt_u32 s{sOffKV}, 524288", f"s_cbranch_scc1 {name}_s1"]
        m = allreduce([MX, MX+1, MX+2, MX+3], [MX+4, MX+5, MX+6, MX+7], op="v_max_f32", lo=16)
        m += [f"v_sub_f32 {v(NG+4*qb+i)}, 0, {v(MX+qb)}" for qb in range(4) for i in range(4)]
        m += [f"v_mov_b64 {v(OB+2*i,2)}, 0" for i in range(64)] + [f"v_accvgpr_write_b32 {a(LB+i)}, 0" for i in range(16)] + [f"s_mov_b32 s{sOffKV}, 0"]
        p2 = [f"{name}_s2:"] + kl + [f"s_mov_b32 s36, s{sOffKV}"]
        for p in range(8): p2 += [f"s_add_u32 m0, s5, {1056*p}", "s_nop 0", f"buffer_load_dwordx4 v2, {q4(sV)}, s36 offen lds", "s_add_u32 s36, s36, 256"]
        vr = [f"ds_read_b64_tr_b16 {a(VF+db*4+2*tt,2)}, v4 offset:{512*tt+32*db}" for db in range(8) for tt in range(2)]
        p2 += ["s_waitcnt vmcnt(0)"] + vr[:8] + self.qk(0, KF, NG) + vr[8:] + self.exps(0) + ["s_nop 0"] + self.cvts(0) + ["s_waitcnt lgkmcnt(0)", "s_nop 0"] + self.pv(0)
        p2 += [f"s_add_u32 s{sOffKV}, s{sOffKV}, 8192", f"s_cmp_lt_u32 s{sOffKV}, 524288", f"s_cbranch_scc1 {name}_s2"]
        e = [f"v_accvgpr_read_b32 {v(vL+2*qb)}, {a(LB+4*qb)}" for qb in range(4)] + ["s_nop 7", f"s_branch {name}_ret"]
        return o + p1 + m + p2 + e, o + p1 + p1 + m + p2 + p2 + e
    def build(self, name):
        parts = [self.front(name), self.attention(name), self.transition(name), self.oproj(name), self.tail(name)]
        sl = self.slow(name)
        text = sum((p[0] for p in parts), []) + self.ool + sl[0]
        trace = sum((p[1] for p in parts), [])
        return text, [trace, sl[1]], dict(grid=256, block=256, lds=163840, vgpr=512, accum=256)
```

```python
from layout import *
import struct, math
def f2u(x): return struct.unpack('<I', struct.pack('<f', x))[0]
def v(b, n=1): return f"v{b}" if n == 1 else f"v[{b}:{b+n-1}]"
def a(b, n=1): return f"a{b}" if n == 1 else f"a[{b}:{b+n-1}]"
def s(b, n=1): return f"s{b}" if n == 1 else f"s[{b}:{b+n-1}]"
def L(t): return [l.strip() for l in t.split("\n") if l.strip()]
NT = ''
DPP = "row_mask:0xf bank_mask:0xf"
LOG2E = f2u(math.log2(math.e))
def srd(d, base, off, size):
    if off == 0: o = [f"s_mov_b32 s{d}, s{base}", f"s_mov_b32 s{d+1}, s{base+1}"] if d != base else []
    else: o = [f"s_add_u32 s{d}, s{base}, {off}", f"s_addc_u32 s{d+1}, s{base+1}, 0"]
    return o + [f"s_mov_b32 s{d+2}, {size}", f"s_mov_b32 s{d+3}, 0x20000"]
def unpack(dst, src, n):
    o = []
    for i in range(n):
        o += [f"v_lshlrev_b32 {v(dst+2*i)}, 16, {v(src+i)}", f"v_and_b32 {v(dst+2*i+1)}, 0xffff0000, {v(src+i)}"]
    return o
def pack(dst, src, n): return [f"v_cvt_pk_bf16_f32 {v(dst+i)}, {v(src+2*i)}, {v(src+2*i+1)}" for i in range(n)]
def rnd2(r0, r1, t):
    return [f"v_cvt_pk_bf16_f32 {v(t)}, {v(r0)}, {v(r1)}", f"v_lshlrev_b32 {v(r0)}, 16, {v(t)}", f"v_and_b32 {v(r1)}, 0xffff0000, {v(t)}"]
def rnd1(r): return [f"v_cvt_pk_bf16_f32 {v(r)}, {v(r)}, {v(r)}", f"v_lshlrev_b32 {v(r)}, 16, {v(r)}"]
def rndn(r, n, t):
    o = pack(t, r, n // 2); return o + unpack(r, t, n // 2)
def allreduce(regs, tmps, op="v_add_f32", lo=1):
    o = []; pad = ["s_nop 1"] if len(regs) == 1 else (["s_nop 0"] if len(regs) == 2 else [])
    for sh in (8, 4, 2, 1):
        if sh < lo: continue
        o += pad if o else ["s_nop 1"]
        o += [f"{op}_dpp {v(r)}, {v(r)}, {v(r)} row_ror:{sh} {DPP}" for r in regs]
    for pl in ("v_permlane16_swap_b32", "v_permlane32_swap_b32"):
        o += [f"v_mov_b32 {v(t)}, {v(r)}" for r, t in zip(regs, tmps)] + (["s_nop 1"] if len(regs) < 2 else ["s_nop 0"] if len(regs) < 3 else [])
        o += [f"{pl} {v(r)}, {v(t)}" for r, t in zip(regs, tmps)]
        o += [f"{op} {v(r)}, {v(r)}, {v(t)}" for r, t in zip(regs, tmps)]
    return o
class Stamp:
    def __init__(self, on, kid): self.on = on; self.kid = kid
    def rd(self, r, c): return [f"s_memrealtime s[98:99]", "s_memtime s[100:101]", "s_waitcnt lgkmcnt(0)", f"s_mov_b32 s{r}, s98", f"s_mov_b32 s{c}, s100"]
    def start(self): return self.rd(96, 97) if self.on else []
    def mid(self, i): return self.rd(84 + 2*i, 85 + 2*i) if self.on else []
    def end(self):
        if not self.on: return []
        o = L(f"""s_waitcnt vmcnt(0) lgkmcnt(0)
        s_memrealtime s[98:99]
        s_memtime s[100:101]
        s_load_dwordx2 s[94:95], s[0:1], {KA_WS}
        s_waitcnt lgkmcnt(0)
        s_add_u32 s94, s94, {WS_TIME + 65536 * (1 + self.kid)}
        s_addc_u32 s95, s95, 0
        s_mov_b64 exec, 1
        s_lshl_b32 s93, s2, 6
        v_mov_b32 v1, s93
        s_getreg_b32 s93, hwreg(HW_REG_XCC_ID)""")
        for k, r in ((0, 96), (1, 98), (2, 93), (4, 84), (5, 86), (6, 88), (8, 97), (9, 100), (12, 85), (13, 87), (14, 89)):
            o += [f"v_mov_b32 v2, s{r}", f"global_store_dword v1, v2, s[94:95] offset:{4*k}"]
        return o

def ln_scalars(sm, sq, t):
    return L(f"""v_mul_f32 {v(sm)}, {f2u(1/1024)}, {v(sm)}
    v_mul_f32 {v(sq)}, {f2u(1/1024)}, {v(sq)}
    v_fma_f32 {v(sq)}, -{v(sm)}, {v(sm)}, {v(sq)}
    v_max_f32 {v(sq)}, 0, {v(sq)}""") + rnd2(sm, sq, t) + [f"v_add_f32 {v(sq)}, {f2u(1e-5)}, {v(sq)}"] + rnd1(sq) + \
      [f"v_sqrt_f32 {v(sq)}, {v(sq)}", "s_nop 0"] + rnd1(sq) + [f"v_rcp_f32 {v(sq)}, {v(sq)}", "s_nop 0"]
def sums(x, n, sm, sq):
    o = [f"v_add_f32 {v(sm)}, {v(x)}, {v(x+1)}", f"v_mul_f32 {v(sq)}, {v(x)}, {v(x)}", f"v_fmac_f32 {v(sq)}, {v(x+1)}, {v(x+1)}"]
    for i in range(2, n): o += [f"v_add_f32 {v(sm)}, {v(sm)}, {v(x+i)}", f"v_fmac_f32 {v(sq)}, {v(x+i)}, {v(x+i)}"]
    return o


def silu(x, n, t):
    o = [f"v_mul_f32 {v(t+i)}, {f2u(-math.log2(math.e))}, {v(x+i)}" for i in range(n)]
    o += [f"v_exp_f32 {v(t+i)}, {v(t+i)}" for i in range(n)] + (["s_nop 0"] if n == 1 else [])
    o += [f"v_add_f32 {v(t+i)}, 1.0, {v(t+i)}" for i in range(n)]
    o += [f"v_rcp_f32 {v(t+i)}, {v(t+i)}" for i in range(n)] + (["s_nop 0"] if n == 1 else [])
    return o + [f"v_mul_f32 {v(x+i)}, {v(x+i)}, {v(t+i)}" for i in range(n)]
def red8(acc):
    o = ["s_nop 1"] + [f"v_permlane32_swap_b32 {v(acc+e)}, {v(acc+4+e)}" for e in range(4)] + [f"v_add_f32 {v(acc+e)}, {v(acc+e)}, {v(acc+4+e)}" for e in range(4)]
    o += ["s_nop 1"] + [f"v_permlane16_swap_b32 {v(acc+e)}, {v(acc+2+e)}" for e in range(2)] + [f"v_add_f32 {v(acc+e)}, {v(acc+e)}, {v(acc+2+e)}" for e in range(2)]
    o += ["s_nop 1"] + [f"v_add_f32_dpp {v(acc+e)}, {v(acc+e)}, {v(acc+e)} row_ror:8 {DPP}" for e in range(2)]
    return o
def code_touch(label, nlines, vaddr, vdst, lane, sp=90):
    return L(f"""s_getpc_b64 s[{sp}:{sp+1}]
    s_add_u32 s{sp}, s{sp}, {label}-.
    s_addc_u32 s{sp+1}, s{sp+1}, 0
    v_min_u32 {v(vaddr)}, {nlines}-1, {v(lane)}
    v_lshlrev_b32 {v(vaddr)}, 7, {v(vaddr)}
    global_load_dword {v(vdst)}, {v(vaddr)}, s[{sp}:{sp+1}]""")

def k_mod(name, st, opt):
    o = L(f"""s_cmp_ge_u32 s2, 256
    s_cbranch_scc1 {name}_end""") + st.start() + L(f"""
    s_load_dwordx4 s[4:7], s[0:1], {KA_C}
    s_load_dwordx2 s[16:17], s[0:1], {KA_WS}
    s_load_dwordx2 s[24:25], s[0:1], {KA_X}
    s_load_dwordx2 s[32:33], s[0:1], {KA_WQ}
    s_cmp_ge_u32 s2, 128
    s_cbranch_scc1 {name}_aux
    s_and_b32 s3, s2, 31
    s_lshr_b32 s20, s2, 5
    v_lshrrev_b32 v1, 3, v0
    v_and_b32 v2, 7, v0
    v_mul_u32_u24 v3, {4*12288}, v1
    v_lshl_add_u32 v3, v2, 4, v3
    s_mul_i32 s21, s20, {256*12288}
    s_lshl_b32 s22, s3, 7
    s_add_u32 s21, s21, s22
    v_lshlrev_b32 v1, 3, v1
    s_lshl_b32 s22, s20, 9
    s_waitcnt lgkmcnt(0)""")
    o += srd(12, 6, 0, 1024 * 12288) + srd(8, 4, 0, 2048)
    for i in range(4):
        o += [f"buffer_load_dwordx4 {v(32+4*i,4)}, v3, s[12:15], s21 offen nt", "s_add_u32 s21, s21, 12288"]
        if i == 0: o += ["buffer_load_dwordx2 v[4:5], v1, s[8:11], s22 offen"]
    o += srd(16, 16, WS_MP1, 32768 + 2048)
    o += L(f"""v_lshrrev_b32 v6, 6, v0
    v_lshlrev_b32 v6, 8, v6
    v_lshl_add_u32 v6, v2, 5, v6
    v_bfe_u32 v7, v0, 4, 2
    v_lshl_add_u32 v6, v7, 3, v6
    v_lshlrev_b32 v7, 2, v0
    s_lshl_b32 s21, s20, 13
    s_lshl_b32 s23, s3, 8
    s_add_u32 s21, s21, s23
    s_add_u32 s22, s22, 32768
    s_waitcnt vmcnt(3)""") + st.mid(0) + unpack(8, 4, 2) + silu(8, 4, 16) + rndn(8, 4, 4)
    for i in range(4):
        o += ([f"s_waitcnt vmcnt({3-i})"] if i else []) + unpack(24, 32 + 4*i, 4)
        o += [(f"v_fmac_f32 {v(16+e)}, {v(8+i)}, {v(24+e)}" if i else f"v_mul_f32 {v(16+e)}, {v(8+i)}, {v(24+e)}") for e in range(8)]
    o += st.mid(1) + red8(16) + L(f"""ds_write_b64 v6, v[16:17]
    s_cmp_lg_u32 s3, 0
    s_cbranch_scc1 {name}_nos
    buffer_store_dwordx2 v[4:5], v1, s[16:19], s22 offen
    {name}_nos:
    s_waitcnt lgkmcnt(0)
    s_barrier
    v_cmp_gt_u32 vcc, 64, v0
    s_and_saveexec_b64 s[26:27], vcc
    s_cbranch_execz {name}_fin""")
    o += [f"ds_read_b32 {v(8+i)}, v7 offset:{256*i}" for i in range(8)] + ["s_waitcnt lgkmcnt(0)"]
    o += [f"v_add_f32 {v(8+i)}, {v(8+i)}, {v(12+i)}" for i in range(4)] + ["v_add_f32 v8, v8, v9", "v_add_f32 v10, v10, v11", "v_add_f32 v8, v8, v10"]
    o += L(f"""buffer_store_dword v8, v7, s[16:19], s21 offen
    s_branch {name}_fin
    {name}_aux:
    v_lshlrev_b32 v1, 7, v0
    s_sub_u32 s3, s2, 128
    s_lshr_b32 s20, s3, 4
    s_lshl_b32 s20, s20, 19
    s_and_b32 s21, s3, 7
    s_lshl_b32 s21, s21, 16
    s_add_u32 s20, s20, s21
    s_bfe_u32 s21, s3, 0x10003
    s_lshl_b32 s21, s21, 15
    s_add_u32 s20, s20, s21
    v_lshlrev_b32 v3, 4, v0
    v_mov_b64 v[6:7], 0
    v_mov_b64 v[8:9], 0
    v_mov_b32 v10, -1
    v_mov_b32 v11, -1
    v_mov_b32 v12, -1
    v_mov_b32 v13, -1
    s_lshl_b32 s21, s3, 13
    s_waitcnt lgkmcnt(0)""") + srd(24, 24, 0, 4 << 20) + srd(12, 16, WS_SENT, SENT_BYTES) + srd(16, 16, WS_FL, 131072)
    o += L(f"""s_sub_u32 s22, {127*8192}, s21
    buffer_store_dwordx4 v[6:9], v3, s[16:19], s22 offen
    buffer_store_dwordx4 v[10:13], v3, s[12:15], s21 offen
    v_cmp_gt_u32 vcc, 256, v0
    s_and_saveexec_b64 s[26:27], vcc
    s_cbranch_execz {name}_aux2
    buffer_load_dword v5, v1, s[24:27], s20 offen {opt.get('xt','')}
    s_branch {name}_fin
    {name}_aux2:
    s_mov_b64 exec, s[26:27]
    s_lshr_b32 s20, s3, 3
    v_cmp_gt_u32 vcc, 384, v0
    s_and_saveexec_b64 s[26:27], vcc
    s_cbranch_execz {name}_aux3""") + srd(32, 32, 0, 8 << 20) + L(f"""
    v_bfe_u32 v1, v0, 3, 4
    v_lshlrev_b32 v1, 13, v1
    v_and_b32 v2, 7, v0
    v_lshl_add_u32 v1, v2, 7, v1
    s_lshl_b32 s21, s20, 17
    s_and_b32 s22, s3, 7
    s_lshl_b32 s22, s22, 10
    s_add_u32 s21, s21, s22""")
    for i in range(opt.get('k0w', 1)): o += ["buffer_load_dword v5, v1, s[32:35], s21 offen nt", f"s_add_u32 s21, s21, {256*8192}"]
    o += L(f"""s_branch {name}_fin
    {name}_aux3:
    s_mov_b64 exec, s[26:27]
    v_and_b32 v1, 31, v0
    v_lshl_add_u32 v1, s20, 5, v1""")
    o = [l.replace("s[26:27]", "s[28:29]") if "exec" in l else l for l in o]
    if opt.get('ct', 1): o += code_touch("attn_kernel", "((attn_slow-attn_kernel)>>7)", 2, 5, 1)
    o += [f"{name}_fin:"] + st.end() + [f"{name}_end:", "s_endpgm"]
    return o, dict(grid=256, block=512, lds=2048, vgpr=64)

def rowhead(name, st, loads, n=256):
    return L(f"""s_cmp_ge_u32 s2, {n}
    s_cbranch_scc1 {name}_end""") + st.start() + L(loads) + L(f"""
    v_lshrrev_b32 v1, 6, v0
    v_mov_b32 v3, v0
    v_readfirstlane_b32 s33, v1
    v_and_b32 v0, 63, v0
    s_lshl_b32 s30, s2, 3
    v_lshlrev_b32 v1, 4, v0
    s_add_u32 s3, s33, s30
    s_lshl_b32 s30, s3, 11
    s_waitcnt lgkmcnt(0)""")

def k_h(name, st, opt):
    o = rowhead(name, st, f"s_load_dwordx8 s[36:43], s[0:1], {KA_X}\ns_load_dwordx2 s[4:5], s[0:1], {KA_WS}")
    o += srd(12, 4, WS_MP1, 32768) + srd(8, 36, 0, 4 << 20)
    X, SA, A = 32, 48, 64
    o += ["v_lshlrev_b32 v2, 4, v3", "v_mov_b32 v81, v3"]
    for p in range(4): o += [f"s_mov_b32 s31, {8192*p}", f"buffer_load_dwordx4 {v(12+4*p,4)}, v2, s[12:15], s31 offen"]
    o += L(f"""buffer_load_dwordx4 v[4:7], v1, s[8:11], s30 offen
    buffer_load_dwordx4 v[8:11], v1, s[8:11], s30 offen offset:1024""")
    npf = 0
    o += srd(16, 4, WS_H, 4 << 20) + L(f"""
    s_lshr_b32 s20, s3, 4
    s_lshl_b32 s20, s20, 10
    s_and_b32 s21, s3, 15
    s_lshl_b32 s21, s21, 4
    s_add_u32 s20, s20, s21
    s_add_u32 s21, s20, {16 << 17}
    s_cmp_ge_u32 s33, 4
    s_cselect_b32 s35, 1.0, 0
    s_waitcnt vmcnt({2+npf})""") + st.mid(0)
    o += [f"v_add_f32 {v(12+e)}, {v(12+e)}, {v(16+e)}" for e in range(4)] + [f"v_add_f32 {v(20+e)}, {v(20+e)}, {v(24+e)}" for e in range(4)]
    o += [f"v_add_f32 {v(12+e)}, {v(12+e)}, {v(20+e)}" for e in range(4)] + rndn(12, 4, 16)
    o += [f"v_add_f32 {v(12+e)}, s35, {v(12+e)}" for e in range(4)] + rndn(12, 4, 16)
    o += L(f"""ds_write_b128 v2, v[12:15]
    v_lshrrev_b32 v2, 2, v0
    v_lshlrev_b32 v2, 17, v2
    v_and_b32 v3, 3, v0
    v_lshl_add_u32 v2, v3, 8, v2
    v_lshlrev_b32 v3, 5, v0
    s_waitcnt vmcnt({npf}) lgkmcnt(0)
    s_barrier""") + st.mid(1)
    if opt.get('pfw', 1):
        o += srd(24, 42, 0, 8 << 20) + L(f"""
        s_cmp_ge_u32 s33, 4
        s_cbranch_scc1 {name}_pf2
        v_lshrrev_b32 v28, 3, v81
        v_lshlrev_b32 v28, 13, v28
        v_and_b32 v29, 7, v81
        v_lshl_add_u32 v28, v29, 7, v28
        s_lshr_b32 s31, s2, 3
        s_lshl_b32 s31, s31, 18
        s_and_b32 s34, s2, 7
        s_lshl_b32 s34, s34, 10
        s_add_u32 s31, s31, s34
        buffer_load_dword v80, v28, s[24:27], s31 offen nt
        s_branch {name}_pf3
        {name}_pf2:
        v_and_b32 v29, 255, v81""") + code_touch("attn_kernel", "((attn_o-attn_kernel)>>7)", 28, 80, 29) + [f"{name}_pf3:"]
    for i in range(4): o += [f"ds_read_b128 {v(SA+4*i,4)}, v3 offset:{16*(i&1) + 2048*(i>>1)}"]
    for i in range(4): o += [f"ds_read_b128 {v(A+4*i,4)}, v3 offset:{4096 + 16*(i&1) + 2048*(i>>1)}"]
    o += unpack(X, 4, 8) + sums(X, 16, 28, 29) + allreduce([28, 29], [30, 31]) + ln_scalars(28, 29, 30)
    o += [f"v_sub_f32 {v(X+i)}, {v(X+i)}, v28" for i in range(16)]
    o += [f"v_mul_f32 {v(X+i)}, {v(X+i)}, v29" for i in range(16)]
    o += ["s_waitcnt lgkmcnt(0)"]
    o += [f"v_fma_f32 {v(X+i)}, {v(X+i)}, {v(A+i)}, {v(SA+i)}" for i in range(16)] + pack(4, X, 8)
    o += [f"buffer_store_dwordx4 v[4:7], v2, s[16:19], s20 offen {opt.get('sth','')}", f"buffer_store_dwordx4 v[8:11], v2, s[16:19], s21 offen {opt.get('sth','')}"] + st.mid(2)
    o += st.end() + [f"{name}_end:", "s_endpgm"]
    return o, dict(grid=256, block=512, lds=8192, vgpr=84)

def ln_scalars_n(sm, sq, n, t):
    R = range(n)
    o = [f"v_mul_f32 {v(sm+i)}, {f2u(1/1024)}, {v(sm+i)}" for i in R] + [f"v_mul_f32 {v(sq+i)}, {f2u(1/1024)}, {v(sq+i)}" for i in R]
    o += [f"v_fma_f32 {v(sq+i)}, -{v(sm+i)}, {v(sm+i)}, {v(sq+i)}" for i in R] + [f"v_max_f32 {v(sq+i)}, 0, {v(sq+i)}" for i in R]
    o += rndn(sm, n, t) + rndn(sq, n, t) + [f"v_add_f32 {v(sq+i)}, {f2u(1e-5)}, {v(sq+i)}" for i in R] + rndn(sq, n, t)
    o += [f"v_sqrt_f32 {v(sq+i)}, {v(sq+i)}" for i in R] + ["s_nop 0"] + rndn(sq, n, t) + [f"v_rcp_f32 {v(sq+i)}, {v(sq+i)}" for i in R] + ["s_nop 0"]
    return o

def k_moe(name, st, opt):
    LM, LK, LX, LR = 98304, 114688, 115712, 120832
    nt = opt.get('ntm', '')
    o = rowhead(name, st, f"""s_load_dwordx4 s[4:7], s[0:1], {KA_WG}
    s_load_dwordx2 s[16:17], s[0:1], {KA_WD}
    s_load_dwordx2 s[28:29], s[0:1], {KA_WS}
    s_load_dwordx2 s[44:45], s[0:1], {KA_OUT}""")
    o += srd(20, 28, WS_STAT, 25600) + ["v_lshlrev_b32 v2, 4, v3", "s_mov_b32 s31, 8192", "s_mov_b32 s34, 16384",
         "buffer_load_dwordx4 v[8:11], v2, s[20:23], 0 offen", "buffer_load_dwordx4 v[12:15], v2, s[20:23], s31 offen", "buffer_load_dwordx4 v[16:19], v2, s[20:23], s34 offen",
         f"s_load_dwordx2 s[52:53], s[20:21], 24576"]
    o += srd(24, 28, WS_X2, 4 << 20) + srd(40, 28, WS_MODF + 2048, 6144 + 64)
    o += L("""buffer_load_dwordx4 v[20:23], v1, s[24:27], s30 offen
    buffer_load_dwordx4 v[24:27], v1, s[24:27], s30 offen offset:1024
    s_mov_b32 s31, 4096
    buffer_load_dwordx4 v[28:31], v1, s[40:43], 0 offen
    buffer_load_dwordx4 v[32:35], v1, s[40:43], 0 offen offset:1024
    buffer_load_dwordx4 v[36:39], v1, s[40:43], 0 offen offset:2048
    buffer_load_dwordx4 v[40:43], v1, s[40:43], 0 offen offset:3072
    buffer_load_dwordx4 v[44:47], v1, s[40:43], s31 offen
    buffer_load_dwordx4 v[48:51], v1, s[40:43], s31 offen offset:1024
    v_and_b32 v4, 31, v0
    v_lshlrev_b32 v4, 3, v4
    s_lshl_b32 s36, s33, 8
    buffer_load_dwordx2 v[52:53], v4, s[40:43], s36 offen
    buffer_load_dwordx2 v[54:55], v4, s[40:43], s36 offen offset:2048""")
    o += srd(8, 4, 0, 1024 * 7168) + srd(12, 6, 0, 1024 * 7168) + srd(16, 16, 0, 3584 * 2048) + srd(44, 44, 0, 4 << 20) + srd(48, 28, WS_YP, 224 * 8192)
    o += L(f"""s_and_b32 s37, s2, 7
    s_mul_i32 s37, s37, 28
    s_lshr_b32 s34, s2, 3
    s_add_u32 s37, s37, s34
    s_cmp_ge_u32 s2, 224
    s_cselect_b32 s37, 0x4000, s37
    v_bfe_u32 v5, v0, 3, 2
    v_lshlrev_b32 v5, 3, v5
    v_lshrrev_b32 v6, 5, v0
    v_lshl_add_u32 v5, v6, 2, v5
    v_bfe_u32 v7, v0, 1, 2
    v_add_u32 v5, v5, v7
    v_mul_u32_u24 v5, 7168, v5
    v_and_b32 v7, 1, v0
    v_lshl_add_u32 v5, v7, 4, v5
    v_bfe_u32 v56, v0, 1, 4
    v_lshlrev_b32 v56, 11, v56
    v_lshl_add_u32 v56, v6, 5, v56
    v_lshl_add_u32 v56, v7, 4, v56
    s_mul_i32 s34, s33, {128*7168}
    s_lshl_b32 s35, s37, 5
    s_add_u32 s34, s34, s35
    s_cmp_ge_u32 s2, 224
    s_cselect_b32 s34, 0x10000000, s34
    s_lshl_b32 s35, s37, 15
    s_add_u32 s35, s35, s36
    s_mul_i32 s38, s33, 12288""")
    for ks in range(4):
        for m in range(2):
            o += [f"s_add_u32 m0, s38, {(ks*2+m)*1024}", "s_nop 0", f"buffer_load_dwordx4 v5, {s(8+4*m,4)}, s34 offen lds {nt}"]
        o += [f"s_add_u32 s34, s34, {32*7168}"]
    for i in range(4):
        o += [f"s_add_u32 m0, s38, {8192+i*1024}", "s_nop 0", f"buffer_load_dwordx4 v56, s[16:19], s35 offen lds {nt}", "s_add_u32 s35, s35, 64"]
    o += ["s_waitcnt vmcnt(22) lgkmcnt(0)"] + st.mid(0) + ln_scalars_n(8, 12, 4, 60)
    o += [f"v_add_u32 v57, {LM}, v2", "ds_write_b128 v57, v[8:11]", "ds_write_b128 v57, v[12:15] offset:8192"]
    o += [f"v_fma_f32 {v(16+i)}, -{v(8+i)}, s52, {v(16+i)}" for i in range(4)] + [f"v_fma_f32 {v(16+i)}, {v(16+i)}, {v(12+i)}, s53" for i in range(4)]
    o += ["v_lshlrev_b32 v58, 2, v3", "v_sub_u32 v58, 2047, v58"]
    for i in range(4):
        o += [f"v_ashrrev_i32 v59, 31, {v(16+i)}", "v_or_b32 v59, 0x80000000, v59", f"v_xor_b32 {v(16+i)}, {v(16+i)}, v59", f"v_and_b32 {v(16+i)}, 0xfffff800, {v(16+i)}",
              f"v_subrev_u32 v59, {i}, v58", f"v_or_b32 {v(16+i)}, {v(16+i)}, v59"]
    o += ["v_max_u32 v60, v16, v17", "v_min_u32 v61, v16, v17"]
    for i in (2, 3): o += [f"v_med3_u32 v61, v60, v61, {v(16+i)}", f"v_max_u32 v60, v60, {v(16+i)}"]
    mrg = ["v_max_u32 v61, v61, v63", "v_med3_u32 v61, v60, v62, v61", "v_max_u32 v60, v60, v62"]
    def dppm(shs):
        r = []
        for sh in shs: r += ["s_nop 1", f"v_mov_b32_dpp v62, v60 row_ror:{sh} {DPP}", f"v_mov_b32_dpp v63, v61 row_ror:{sh} {DPP}"] + mrg
        return r
    o += dppm((8, 4, 2, 1))
    o += L(f"""v_lshrrev_b32 v58, 4, v3
    v_lshlrev_b32 v58, 3, v58
    v_add_u32 v58, {LK}, v58
    ds_write_b64 v58, v[60:61]
    v_and_b32 v58, 15, v0
    v_lshlrev_b32 v58, 4, v58
    v_add_u32 v58, {LK}, v58
    s_waitcnt lgkmcnt(0)
    s_barrier
    ds_read_b128 v[60:63], v58
    s_lshl_b32 s31, s3, 2
    s_add_u32 s31, s31, {LM}
    v_mov_b32 v57, s31
    ds_read2st64_b32 v[64:65], v57 offset0:0 offset1:32
    s_waitcnt lgkmcnt(1)""") + mrg + dppm((8, 4, 2, 1))
    o += L(f"""v_cmp_lt_u32 vcc, 31, v0
    s_nop 1
    v_cndmask_b32 v62, v60, v61, vcc
    v_and_b32 v63, 2047, v62
    v_sub_u32 v63, 2047, v63
    v_lshl_add_u32 v58, v63, 11, v4
    buffer_load_dwordx2 v[66:67], v58, s[24:27], s36 offen
    v_lshlrev_b32 v63, 2, v63
    v_add_u32 v63, {LM}, v63
    ds_read2st64_b32 v[68:69], v63 offset0:0 offset1:32
    s_waitcnt vmcnt(15) lgkmcnt(1)""")
    o += st.mid(1)
    X, T, B = 72, 88, 104
    o += unpack(X, 20, 8) + unpack(T, 36, 8) + unpack(B, 28, 8)
    H = 20
    o += [f"v_sub_f32 {v(H+i)}, {v(X+i)}, v64" for i in range(16)] + [f"v_mul_f32 {v(H+i)}, {v(H+i)}, v65" for i in range(16)]
    o += [f"v_fma_f32 {v(H+i)}, {v(H+i)}, {v(T+i)}, {v(B+i)}" for i in range(16)] + rndn(H, 16, 36) + unpack(T, 44, 8)
    o += [f"v_mul_f32 {v(H+i)}, {v(H+i)}, {v(T+i)}" for i in range(16)] + rndn(H, 16, 36)
    o += [f"v_add_f32 {v(H+i)}, {v(H+i)}, {v(X+i)}" for i in range(16)] + pack(36, H, 8)
    so = opt.get('stout', 'sc1')
    o += [f"buffer_store_dwordx4 v[36:39], v1, s[44:47], s30 offen {so}", f"buffer_store_dwordx4 v[40:43], v1, s[44:47], s30 offen offset:1024 {so}"]
    o += L(f"""s_cmp_ge_u32 s2, 224
    s_cbranch_scc1 {name}_fin
    v_lshlrev_b32 v6, 3, v0
    v_add_u32 v5, s38, v6
    s_lshl_b32 s31, s33, 9
    s_add_u32 s31, s31, {LX}
    v_add_u32 v6, s31, v6
    v_lshrrev_b32 v12, 4, v0
    v_lshlrev_b32 v13, 8, v7
    v_lshl_add_u32 v13, v12, 4, v13
    v_add_u32 v13, s31, v13
    s_waitcnt vmcnt(2) lgkmcnt(0)""") + st.mid(2)
    for i in range(12): o += [f"ds_read_b64_tr_b16 {a(2*i,2)}, v5 offset:{512*i}"]
    o += unpack(8, 66, 2) + unpack(16, 52, 2) + unpack(20, 54, 2)
    o += [f"v_sub_f32 {v(8+i)}, {v(8+i)}, v68" for i in range(4)] + [f"v_mul_f32 {v(8+i)}, {v(8+i)}, v69" for i in range(4)]
    o += [f"v_fma_f32 {v(8+i)}, {v(8+i)}, {v(20+i)}, {v(16+i)}" for i in range(4)] + pack(14, 8, 2)
    o += ["s_waitcnt lgkmcnt(4)", "ds_write_b64 v6, v[14:15]"]
    for i in range(12, 16): o += [f"ds_read_b64_tr_b16 {a(2*i,2)}, v5 offset:{512*i}"]
    o += [f"ds_read_b128 {v(16+4*ks,4)}, v13 offset:{64*ks}" for ks in range(4)]
    o += L(f"""s_or_b32 s39, s2, s33
    s_cmp_lg_u32 s39, 0
    s_cbranch_scc1 {name}_nosel
    v_lshrrev_b32 v8, 5, v0
    v_lshlrev_b32 v8, 4, v8
    v_mov_b32 v67, v62
    s_mov_b32 s39, 6144
    buffer_store_dwordx3 v[67:69], v8, s[40:43], s39 offen
    {name}_nosel:
    s_lshl_b32 s39, s33, 11
    s_add_u32 s39, s39, {LR}
    v_add_u32 v9, s39, v1
    v_add_u32 v10, {LR}, v1
    s_waitcnt lgkmcnt(0)""").copy()
    o = [l.replace("v[67:69]", "v[66:68]") for l in o]
    i0 = o.index("v_mov_b32 v67, v62"); o[i0:i0+1] = ["v_mov_b32 v66, v62", "v_mov_b32 v67, v68", "v_mov_b32 v68, v69"]
    for i in range(8): o += [f"ds_read_b64_tr_b16 {a(32+2*i,2)}, v5 offset:{8192+512*i}"]
    for ks in range(4):
        for m in range(2):
            o += [f"v_mfma_f32_16x16x32_bf16 {v(32+4*m,4)}, {a((ks*2+m)*4,4)}, {v(16+4*ks,4)}, {v(32+4*m,4) if ks else 0}"]
    o += L(f"""s_nop 7
    ds_write_b128 v9, v[32:35]
    ds_write_b128 v9, v[36:39] offset:1024
    s_waitcnt lgkmcnt(0)
    s_barrier""")
    for i in range(16): o += [f"ds_read_b128 {v(16+4*i,4)}, v10 offset:{1024*i}"] + (["s_waitcnt lgkmcnt(8)"] if i == 11 else [])
    o += L(f"""v_and_b32 v11, 15, v0
    v_lshlrev_b32 v13, 12, v11
    v_lshl_add_u32 v13, v12, 4, v13
    s_lshl_b32 s36, s37, 13
    s_lshl_b32 s39, s33, 9
    s_add_u32 s36, s36, s39""")
    for w in range(1, 8): o += [f"s_waitcnt lgkmcnt({14-2*w})"] + [f"v_add_f32 {v(16+i)}, {v(16+i)}, {v(16+8*w+i)}" for i in range(8)]
    o += rndn(16, 8, 24) + silu(16, 4, 24) + rndn(16, 4, 24)
    o += [f"v_mul_f32 {v(16+i)}, {v(16+i)}, {v(20+i)}" for i in range(4)] + pack(14, 16, 2) + ["s_nop 1"]
    o += [f"v_mfma_f32_16x16x16_bf16 {v(16+4*i,4)}, {a(32+2*i,2)}, v[14:15], 0" for i in range(8)]
    o += ["v_cmp_gt_u32 vcc, 2, v11", "s_and_saveexec_b64 s[54:55], vcc", "s_nop 5"]
    o += [f"buffer_store_dwordx4 {v(16+4*i,4)}, v13, s[48:51], s36 offen offset:{64*i}" for i in range(8)]
    o += [f"{name}_fin:"] + st.end() + [f"{name}_end:", "s_endpgm"]
    return o, dict(grid=256, block=512, lds=LR+16384, vgpr=120+48, accum=120)

def k_fin(name, st, opt):
    o = L(f"""s_cmp_ge_u32 s2, 64
    s_cbranch_scc1 {name}_end""") + st.start() + L(f"""
    s_load_dwordx2 s[4:5], s[0:1], {KA_WS}
    s_load_dwordx2 s[12:13], s[0:1], {KA_OUT}
    v_and_b32 v1, 7, v0
    v_lshrrev_b32 v2, 3, v0
    v_mul_u32_u24 v2, {7*8192}, v2
    v_lshl_add_u32 v2, v1, 4, v2
    s_lshl_b32 s3, s2, 7
    s_lshr_b32 s30, s2, 5
    s_lshl_b32 s30, s30, 4
    s_add_u32 s30, s30, {WS_SEL}
    s_waitcnt lgkmcnt(0)
    s_load_dwordx4 s[36:39], s[4:5], s30""")
    o += srd(8, 4, WS_YP, 224 * 8192) + srd(12, 12, 0, 4 << 20) + srd(16, 4, WS_X2, 4 << 20) + srd(20, 4, WS_MODF + 2048, 6144)
    for i in range(7): o += [f"buffer_load_dwordx4 {v(8+4*i,4)}, v2, s[8:11], s3 offen", "s_add_u32 s3, s3, 8192"]
    o += L(f"""s_and_b32 s32, s2, 31
    s_lshl_b32 s32, s32, 6
    s_add_u32 s35, s32, 4096
    v_lshlrev_b32 v3, 3, v1
    buffer_load_dwordx2 v[38:39], v3, s[20:23], s32 offen
    buffer_load_dwordx2 v[40:41], v3, s[20:23], s32 offen offset:2048
    buffer_load_dwordx2 v[42:43], v3, s[20:23], s35 offen
    s_waitcnt lgkmcnt(0)
    s_and_b32 s33, s36, 2047
    s_sub_u32 s33, 2047, s33
    s_lshl_b32 s33, s33, 11
    s_add_u32 s33, s33, s32
    buffer_load_dwordx2 v[36:37], v3, s[16:19], s33 offen
    s_and_b32 s31, s36, 0xfffff800
    s_ashr_i32 s34, s31, 31
    s_not_b32 s34, s34
    s_or_b32 s34, s34, 0x80000000
    s_xor_b32 s31, s31, s34
    v_mov_b32 v4, s31""") + rnd1(4) + L(f"""
    v_mul_f32 v4, {f2u(-math.log2(math.e))}, v4
    v_exp_f32 v4, v4
    s_nop 0
    v_add_f32 v4, 1.0, v4
    v_rcp_f32 v4, v4
    s_nop 0""") + rnd1(4)
    for i in range(1, 7): o += [f"s_waitcnt vmcnt({10-i})"] + [f"v_add_f32 {v(8+e)}, {v(8+e)}, {v(8+4*i+e)}" for e in range(4)]
    o += allreduce([8, 9, 10, 11], [12, 13, 14, 15], lo=8)
    o += L(f"""v_lshrrev_b32 v5, 6, v0
    v_lshlrev_b32 v5, 7, v5
    v_lshl_add_u32 v5, v1, 4, v5
    ds_write_b128 v5, v[8:11]
    v_lshlrev_b32 v5, 4, v1
    s_waitcnt vmcnt(0)""")
    o += unpack(16, 36, 2) + unpack(24, 38, 2) + unpack(28, 40, 2) + unpack(32, 42, 2)
    o += [f"v_subrev_f32 {v(20+e)}, s37, {v(16+e)}" for e in range(4)] + [f"v_mul_f32 {v(20+e)}, s38, {v(20+e)}" for e in range(4)]
    o += [f"v_fma_f32 {v(20+e)}, {v(20+e)}, {v(28+e)}, {v(24+e)}" for e in range(4)] + rndn(20, 4, 12)
    o += L(f"""s_waitcnt lgkmcnt(0)
    s_barrier
    v_cmp_gt_u32 vcc, 8, v0
    s_and_saveexec_b64 s[40:41], vcc
    s_cbranch_execz {name}_fin""")
    o += [f"ds_read_b128 {v(r,4)}, v5 offset:{128*i}" for i, r in enumerate((8, 12, 24, 28))] + ["s_waitcnt lgkmcnt(0)"]
    for r in (12, 24, 28): o += [f"v_add_f32 {v(8+e)}, {v(8+e)}, {v(r+e)}" for e in range(4)]
    o += rndn(8, 4, 12) + [f"v_mul_f32 {v(8+e)}, {v(8+e)}, v4" for e in range(4)] + rndn(8, 4, 12)
    o += [f"v_add_f32 {v(8+e)}, {v(8+e)}, {v(20+e)}" for e in range(4)] + rndn(8, 4, 12)
    o += [f"v_mul_f32 {v(8+e)}, {v(8+e)}, {v(32+e)}" for e in range(4)] + rndn(8, 4, 12)
    o += [f"v_add_f32 {v(8+e)}, {v(8+e)}, {v(16+e)}" for e in range(4)] + pack(12, 8, 2)
    o += ["buffer_store_dwordx2 v[12:13], v3, s[12:15], s33 offen", f"{name}_fin:"]
    o += st.end() + [f"{name}_end:", "s_endpgm"]
    return o, dict(grid=64, block=256, lds=512, vgpr=48)
```

```python
from layout import *
from small import *
import math
MF = "v_mfma_f32_16x16x32_bf16"
G = 4160; SLOT = 4 * G; WBLK = 8448; BIAS = 4096
RING = 6; LEAD = 4; WBASE = 5 * SLOT
STG = 163840 - 49152
LV = 16 * WBLK
LDN = 8 * WBLK
SPIN = 400000
vKa, vVa, vKa2, vVa2, vWa, vD0, vD1, vD2, vD3, vW0, vW1, vH = 1, 2, 3, 4, 5, 6, 7, 8, 9, 10, 11, 12
OB = 16; SB = 144; PB = 208
vSent, vBm, vBg, vBt, vDum, vL = 240, 244, 245, 246, 247, 248
QB = 0; KF = 64; VF = 96; LB = 128; ONES = 144
WFQ = 0; HF = 128
GU = 148; WM = 212; SI = 244; CP = 252
sK, sV, sW, sH, sWD = 8, 12, 16, 20, 24
sX, sG, sWO, sWR, sU, sWM, sOUT, sWS = 40, 44, 48, 52, 56, 60, 64, 68
sHead, sWv, sMkv, sMw, sOffKV, sOffW, sOffH, sCnt, sRb = 3, 28, 29, 30, 31, 32, 33, 34, 35
sLim, sR, sBm, sBo0, sBo1, sAr = 72, 73, 74, 75, 76, 77
sT0 = 78; sC = 80
def O(db, qb): return OB + (db * 4 + qb) * 4
def S(par, t, qb): return SB + par * 32 + (qb * 2 + t) * 4
def P(par, qb): return PB + par * 16 + qb * 4
def Q(qb, ks): return QB + (qb * 4 + ks) * 4
def A(qb, nb): return OB + (qb * 8 + nb) * 4
def q4(r): return s(r, 4)
def weave(mf, gaps, pre=()):
    out = list(pre)
    for i, m in enumerate(mf):
        out.append(m); out += gaps.get(i, [])
    for k in sorted(gaps):
        if k >= len(mf): out += gaps[k]
    return out
def spread(items, g, first, last, per=2):
    for i, e in enumerate(items): g.setdefault(min(last, first + i // per), []).append(e)
class VM:
    def __init__(self): self.ops = []
    def issue(self, tag, n=1): self.ops += [tag] * n
    def need(self, *tags):
        last = max(i for i, t in enumerate(self.ops) if t in tags)
        return min(63, len(self.ops) - 1 - last)
def anysent(r, n, t0, t1):
    o = [f"v_max3_u32 {v(t0)}, {v(r)}, {v(r+1)}, {v(r+1)}"] if n == 2 else [f"v_max_u32 {v(t0)}, {v(r)}, {v(r+1)}", f"v_max_u32 {v(t1)}, {v(r+2)}, {v(r+3)}"]
    for k, i in enumerate(range(4, n, 2)): o += [f"v_max3_u32 {v((t0, t1)[k & 1])}, {v((t0, t1)[k & 1])}, {v(r+i)}, {v(r+i+1)}"]
    if n > 2: o += [f"v_max_u32 {v(t0)}, {v(t0)}, {v(t1)}"]
    return o + [f"v_cmp_eq_u32 vcc, -1, {v(t0)}"]

def ramp(n, D, pre):
    hi = lambda m: pre - 1 if m < 0 else min(31, m + D, pre + 2 * m + 1)
    return list(range(hi(n - 1) + 1, hi(n) + 1))
class Mega:
    def __init__(self, opt, stamps):
        self.o = opt; self.stamps = stamps; self.nst = 0; self.ool = []; self.npoll = 0
    def hs(self, k=1): return self.stamp(fine=True) if self.o.get('dbgh') == k else []
    def stamp(self, last=False, fine=False):
        self.ncall = getattr(self, 'ncall', 0) + (not fine)
        if not fine and not last and self.ncall - 1 in self.o.get('skip', ()): return []
        if self.o.get('probe'):
            r = self.nst; self.nst += 1
            return ["s_memrealtime s[100:101]", "s_waitcnt lgkmcnt(0)", "s_mov_b32 s79, s100"] if r == self.o['probe'][0] or r == 0 else []
        if not self.stamps: return []
        r = self.nst; self.nst += 1
        if self.o.get('dbgh') and r >= 15 and not last: return []
        r = min(r, 15)
        return ["s_memrealtime s[100:101]", "s_memtime s[98:99]", "s_waitcnt lgkmcnt(0)", f"v_writelane_b32 v255, s100, {r}", f"v_writelane_b32 v255, s98, {16+r}"]
    def poll(self, name, loads, check, vm=0):
        self.npoll += 1; n = f"{name}_p{self.npoll}"
        inl = [f"s_waitcnt vmcnt({vm})"] + check + ["s_mov_b32 s4, 0", "s_nop 0", f"s_cbranch_vccnz {n}_r", f"{n}_k:"]
        rt = [f"{n}_r:"] + ([f"s_sleep {self.o['slp']}"] if self.o.get('slp') else []) + loads + ["s_waitcnt vmcnt(0)"] + check + ["s_add_u32 s4, s4, 1", f"s_cmp_ge_u32 s4, {SPIN}", f"s_cbranch_scc1 {n}_k", f"s_cbranch_vccnz {n}_r", f"s_branch {n}_k"]
        self.ool += rt
        return inl, inl + rt
    def kreads(self, slot, dst=KF):
        rs = (slot - LEAD) % RING; r, o = (vKa, rs * SLOT) if rs < 3 else (vKa2, (rs - 3) * SLOT)
        return [f"ds_read_b128 {a(dst + (t*4+ks)*4, 4)}, {v(r)} offset:{o + 512*t + 64*ks}" for t in range(2) for ks in range(4)]
    def vreads(self, slot, dst=VF):
        rs = (slot - LEAD) % RING; r, o = (vVa, rs * SLOT) if rs < 3 else (vVa2, (rs - 3) * SLOT)
        return [f"ds_read_b64_tr_b16 {a(dst + db*4 + 2*tt, 2)}, {v(r)} offset:{o + 512*tt + 32*db}" for db in range(8) for tt in range(2)]
    def dma_setup(self, slot): return [f"s_add_u32 m0, s{sMkv}, {(slot % RING) * SLOT}", f"s_add_u32 s{sOffKV}, s{sOffKV}, 8192"]
    def dmas(self, k=True, vv=True):
        nt = self.o.get('ntkv', 'nt'); o = []
        if k: o += [f"buffer_load_dwordx4 {v(vD0)}, {q4(sK)}, s{sOffKV} offen lds {nt}", f"buffer_load_dwordx4 {v(vD1)}, {q4(sK)}, s{sOffKV} offen offset:1056 lds {nt}"]
        if vv: o += [f"buffer_load_dwordx4 {v(vD2)}, {q4(sV)}, s{sOffKV} offen offset:2080 lds {nt}", f"buffer_load_dwordx4 {v(vD3)}, {q4(sV)}, s{sOffKV} offen offset:3136 lds {nt}"]
        return o
    def qk(self, par, kf=KF, c0=None):
        out = []
        for t in range(2):
            for qb in range(4):
                for ks in range(4):
                    d = v(S(par, t, qb), 4); c = d if ks else ("0" if c0 is None else v(c0 + 4 * qb, 4))
                    out.append(f"{MF} {d}, {a(kf + (t*4+ks)*4, 4)}, {a(Q(qb, ks), 4)}, {c}")
        return out
    def pv(self, par, vf=VF):
        out = [f"{MF} {a(LB+4*qb,4)}, {a(ONES,4)}, {v(P(par,qb),4)}, {a(LB+4*qb,4)}" for qb in range(4)]
        order = [(db, qb) for db in range(8) for qb in range(4)] if not self.o.get('pvq') else [(db, qb) for qb in range(4) for db in range(8)]
        return out + [f"{MF} {v(O(db,qb),4)}, {a(vf+db*4,4)}, {v(P(par,qb),4)}, {v(O(db,qb),4)}" for db, qb in order]
    def exps(self, par): return [f"v_exp_f32 {v(SB+par*32+e)}, {v(SB+par*32+e)}" for e in range(32)]
    def cvts(self, par): return [f"v_cvt_pk_bf16_f32 {v(PB+par*16+n)}, {v(SB+par*32+2*n)}, {v(SB+par*32+2*n+1)}" for n in range(16)]
    def sync(self, slot, force=False, vm=8):
        if force or slot % 2 == 0: return [f"s_waitcnt vmcnt({vm}) lgkmcnt(0)", "s_barrier"]
        return ["s_waitcnt lgkmcnt(0)"]
    def slot(self, b, tail=(), extra=None, vm=8):
        sch = self.o.get('sch', 0)
        mf = self.qk((b + 1) & 1) + self.pv((b - 1) & 1)
        ex = self.exps(b & 1); cv = self.cvts(b & 1); vr = self.vreads(b); kr = self.kreads(b); dm = self.dmas()
        if self.o.get('x_nodma'): dm = ["s_nop 0"] * 4
        g = {i: [] for i in range(len(mf))}
        K = lambda k: g[2 * k + 1]
        pre = self.sync(b, vm=vm)
        if self.o.get('x_nobar'): pre = pre[:1]
        if sch == 0:
            for e in range(32): g[2 * e].append(ex[e])
            K(0).extend(self.dma_setup(b))
            for k in range(1, 9): K(k).extend(vr[2*k-2:2*k])
            K(9).append(dm[0]); K(10).extend(cv[0:2]); K(11).extend(cv[2:4]); K(12).extend(cv[4:6])
            K(13).append(dm[1]); K(14).append(cv[6]); K(15).append("s_waitcnt lgkmcnt(0)")
            for k in range(16, 20): K(k).extend(kr[2*(k-16):2*(k-16)+2])
            K(20).append(dm[2]); K(21).extend(cv[7:9]); K(22).extend(cv[9:11]); K(24).append(dm[3])
            K(25).append(cv[11]); K(27).append(cv[12]); K(29).append(cv[13]); K(30).append(cv[14]); K(31).append(cv[15])
        elif sch == 1:
            for e in range(32): g[2 * e].append(ex[e])
            su = self.dma_setup(b)
            for k in range(16): K(k).append(vr[k])
            K(0).append(su[0]); K(1).append(su[1])
            for n in range(7): K(2 + 2*n).append(cv[n])
            K(16).append(dm[0]); K(17).extend(["s_waitcnt lgkmcnt(0)", cv[7]])
            K(18).append(dm[1]); K(21).append(dm[2]); K(24).append(dm[3])
            for k, n in zip((19, 20, 22, 23), range(4)): K(k).extend(kr[2*n:2*n+2])
            K(25).append(cv[8]); K(27).append(cv[9]); K(29).extend(cv[10:12]); K(30).extend(cv[12:14]); K(31).extend(cv[14:16])
        elif sch == 2:
            for e in range(32): g[2 * e + 2].append(ex[e])
            if len(pre) == 2: g[0].append(pre[1]); pre = pre[:1]
            K(0).extend(self.dma_setup(b))
            for k in range(1, 9): K(k).extend(vr[2*k-2:2*k])
            K(9).append(dm[0]); K(10).extend(cv[0:2]); K(11).extend(cv[2:4]); K(12).extend(cv[4:5])
            K(13).append(dm[1]); K(14).append(cv[5]); K(15).extend(["s_waitcnt lgkmcnt(0)", cv[6]])
            for k in range(16, 20): K(k).extend(kr[2*(k-16):2*(k-16)+2])
            K(20).append(dm[2]); K(21).extend(cv[7:9]); K(22).extend(cv[9:10]); K(24).append(dm[3])
            K(25).append(cv[10]); K(27).append(cv[11]); K(29).extend(cv[12:14]); K(30).append(cv[14]); K(32).append(cv[15])
        tg = 66 if sch == 2 else 64
        g[tg].extend(tail[:-1]); g[67].extend(tail[-1:])
        if extra:
            for k, e in extra.items(): g[63 if (sch == 2 and k == 64) else k].extend(e)
        return weave(mf, g, pre)
    def bg(self, k):
        nt = self.o.get('ntbg', 'nt'); ntg = self.o.get('ntg', 'nt')
        if self.o.get('nobg'): return {}, 0
        g, n = self.bg_(k)
        off = self.o.get('bgoff', ())
        for key in list(g):
            keep = [x for x in g[key] if not any(o in x for o in off)]
            n -= len(g[key]) - len(keep); g[key] = keep
        return g, n
    def bg_(self, k):
        nt = self.o.get('ntbg', 'nt'); ntg = self.o.get('ntg', 'nt')
        if k == 0: return {45: [f"s_min_u32 s7, s{sCnt}, 7"], 47: [f"s_mul_i32 s5, s{sR}, {8*12288}", f"s_add_u32 s5, s5, s{sBo0}"], 51: [f"s_mov_b32 m0, s{sBm}"],
                           53: [f"buffer_load_dwordx4 {v(vBm)}, {q4(sWM)}, s5 offen lds {nt}"], 55: [f"s_and_b32 s6, s{sR}, 3"], 57: ["s_lshl_b32 s6, s6, s78"],
                           65: [f"buffer_load_dword {v(vDum)}, {v(vBt)}, {q4(sWO)}, s6 offen"]}, 2
        if k == 1: return {47: [f"s_mul_i32 s5, s{sR}, {32*7168}", f"s_add_u32 s5, s5, s{sBo1}"], 51: [f"s_add_u32 m0, s{sBm}, 1024"],
                           53: [f"buffer_load_dwordx4 {v(vBg)}, {q4(sG)}, s5 offen lds {ntg}"]}, 1
        if k == 2: return {47: [f"s_lshl_b32 s7, s7, 10", f"s_add_u32 s6, s7, s{sAr}"], 51: [f"s_add_u32 m0, s{sBm}, 2048"],
                           53: [f"buffer_load_dwordx4 {v(vBg)}, {q4(sU)}, s5 offen lds {ntg}"], 57: ["s_sub_u32 s6, s6, 1024"]}, 1
        if k == 3: return {53: [f"buffer_store_dwordx4 {v(vSent,4)}, {v(vH)}, {q4(sWS)}, s6 offen sc1"],
                           57: [f"s_bitcmp1_b32 {sum(1 << i for i in (1,2,3,5,6,7,8))}, s{sCnt}", f"s_addc_u32 s{sR}, s{sR}, 0"],
                           64: [f"s_and_b32 s5, s{sR}, 3", f"s_mul_i32 s5, s5, 3072"], 65: [f"s_mul_i32 s{sBm}, s{sWv}, 12288", f"s_add_u32 s5, s5, {STG}"],
                           66: [f"s_add_u32 s{sBm}, s{sBm}, s5"]}, 1
        return {}, 0
    def stg_reads(self, half):
        o = L(f"""s_mul_i32 s5, s{sWv}, 12288
        s_add_u32 s5, s5, {STG}
        v_lshl_add_u32 v13, v0, 3, s5
        v_lshrrev_b32 v14, 4, v0
        v_mul_u32_u24 v14, 3072, v14
        v_bfe_u32 v15, v0, 2, 2
        v_lshl_add_u32 v14, v15, 7, v14
        v_and_b32 v15, 3, v0
        v_lshl_add_u32 v14, v15, 3, v14
        v_add_u32 v14, s5, v14""")
        r = [f"ds_read_b64_tr_b16 {a(WM+half*16+nb*4+2*tt,2)}, v14 offset:{512*tt+32*nb}" for nb in range(4) for tt in range(2)]
        r += [f"ds_read_b64_tr_b16 {a(GU+((half*4+p)*2+m)*4+2*tt,2)}, v13 offset:{3072*p+1024*(m+1)+512*tt}" for p in range(4) for m in range(2) for tt in range(2)]
        return o + r[:12] + ["s_waitcnt lgkmcnt(2)"] + r[12:]
    def wreads(self, n):
        o = (n % 8) * WBLK; d = WFQ + (n & 1) * 32
        return [f"ds_read_b64_tr_b16 {a(d + db*4 + 2*tt, 2)}, {v(vWa)} offset:{o + 512*tt + 64*(db>>1) + 8*(db&1)}" for db in range(8) for tt in range(2)]
    def wdma(self, n):
        nt = self.o.get('ntw', 'nt')
        return [f"s_add_u32 m0, s{sMw}, {(n % 8) * WBLK}", f"s_add_u32 s{sOffW}, s{sOffW}, {32*8192}",
                f"buffer_load_dwordx4 {v(vW0)}, {q4(sW)}, s{sOffW} offen lds {nt}", f"buffer_load_dwordx4 {v(vW1)}, {q4(sW)}, s{sOffW} offen offset:1056 lds {nt}"]
    def hload(self, n):
        return [f"s_add_u32 s{sOffH}, s{sOffH}, {1 << 17}"] + \
               [f"buffer_load_dwordx4 {a(HF + (n % 8)*16 + qb*4, 4)}, {v(vH)}, {q4(sWS)}, s{sOffH} offen offset:{1024*qb} sc1" for qb in range(4)]
    def qstep(self, n, vm, extra=None, extra_vm=0):
        D = self.o.get('D', 4); DW = self.o.get('DW', 7)
        mf = [f"{MF} {v(O(db,qb),4)}, {a(WFQ+(n&1)*32+db*4,4)}, {a(HF+(n%8)*16+qb*4,4)}, {v(O(db,qb),4) if n else 0}" for db in range(8) for qb in range(4)]
        b2 = self.o.get('qb2', 0); assert DW <= 7 - b2
        cnt = vm.need(f"H{n}", *([f"W{min(n+1,31)}"] if not b2 else [f"W{min(n+2,31)}", f"W{min(n+1,31)}"] if n % 2 == 0 else []))
        g = {i: [] for i in range(32)}
        rs = ramp(n, D, self.o.get('qpre', 2))
        for j, m in enumerate(rs):
            hl = self.hload(m)
            if len(rs) == 1:
                g[1] += [hl[0]]
                for k in range(4): g[3 + 4*k] += [hl[1 + k]]
            else:
                g[1 + 8*j] += [hl[0]]
                for k in range(4): g[1 + 8*j + 2*k] += [hl[1 + k]]
            vm.issue(f"H{m}", 4)
        if n + DW + 1 <= 31:
            wd = self.wdma(n + DW + 1); g[0] += wd[0:2]; g[19] += [wd[2]]; g[23] += [wd[3]]
            vm.issue(f"W{n+DW+1}", 2)
        vm.issue("X", extra_vm)
        if n < 31:
            wr = self.wreads(n + 1)
            for k in range(8): g[2 + 2*k] += wr[2*k:2*k+2]
        if extra:
            for k, e in extra.items(): g[k] += e
        return weave(mf, g, [f"s_waitcnt vmcnt({cnt}) lgkmcnt(0)"] + (["s_barrier"] if n < 31 and not (b2 and n % 2) else []))
    def pack(self, table, scale):
        o = []
        for sidx in range(4):
            for qb in range(4):
                for t in range(2):
                    b = O(2*sidx + t, qb)
                    o += [f"v_pk_mul_f32 {v(b+2*u,2)}, {v(b+2*u,2)}, {scale(qb)}" for u in range(2)]
                for t in range(2):
                    b = O(2*sidx + t, qb)
                    o += [f"v_cvt_pk_bf16_f32 {v(SB+(sidx*4+qb)*4+2*t+u)}, {v(b+2*u)}, {v(b+2*u+1)}" for u in range(2)]
                o += table(sidx, qb, SB + (sidx*4+qb)*4)
        return o
    def front(self, name):
        D = self.o.get('D', 4); DW = self.o.get('DW', 7); W1 = self.o.get('W1', 2); vm = VM(); nct = self.o.get('ct', 1)
        WR_, CR, XR, X, XC, XF = 96, 112, 176, 192, 144, 16
        pro = L(f"""s_load_dwordx8 s[56:63], s[0:1], 64
        s_load_dwordx2 s[68:69], s[0:1], {KA_WS}
        s_load_dwordx16 s[40:55], s[0:1], 0
        s_load_dwordx2 s[64:65], s[0:1], {KA_OUT}
        s_cmp_ge_u32 s2, 256
        s_cbranch_scc1 {name}_end
        v_lshrrev_b32 v13, 6, v0""")
        if nct:
            pro += L(f"""s_lshr_b32 s36, s2, 3
            s_lshl_b32 s36, s36, 4
            s_add_u32 s36, s36, 128
            v_lshrrev_b32 v14, 1, v0
            v_lshrrev_b32 v15, 4, v0
            v_add_u32 v15, s36, v15
            v_and_b32 v80, 1, v0
            v_cmp_eq_u32 vcc, 1, v80
            s_nop 1
            v_cndmask_b32 v14, v14, v15, vcc""") + code_touch(f"{name}_c0", f"(({name}_slow-{name}_c0)>>7)", 14, vDum, 14, sp=36) + [f"{name}_c0:"]
        pro += self.stamp() + L(f"""v_lshrrev_b32 v14, 3, v0
        v_readfirstlane_b32 s{sWv}, v13
        v_and_b32 v15, 7, v0
        v_mul_u32_u24 v80, {4*12288}, v14
        v_lshl_add_u32 v80, v15, 4, v80
        v_lshlrev_b32 v81, 3, v14
        v_lshlrev_b32 v224, 4, v0
        v_lshlrev_b32 v82, 2, v0
        v_and_b32 v0, 63, v0
        v_lshlrev_b32 {v(vH)}, 4, v0
        s_and_b32 s3, s2, 7
        s_lshl_b32 s3, s3, 2
        s_bfe_u32 s35, s2, 0x20003
        s_add_u32 s3, s3, s35
        s_andn2_b32 s39, s2, 31
        s_add_u32 s39, s39, s3
        s_lshl_b32 s39, s39, 14
        s_lshl_b32 s4, s{sWv}, 12
        s_add_u32 s39, s39, s4
        s_lshr_b32 s38, s2, 5
        s_mul_i32 s4, s38, {128*12288}
        s_and_b32 s37, s2, 31
        s_lshl_b32 s5, s37, 7
        s_add_u32 s4, s4, s5
        s_add_u32 s5, s4, 12288
        s_add_u32 s6, s4, {2*12288}
        s_add_u32 s7, s4, {3*12288}
        s_lshl_b32 s36, s38, 8
        s_mov_b32 s85, {WS_TAG}
        s_waitcnt lgkmcnt(0)
        s_load_dword s85, s[68:69], s85""") + srd(sH, 40, 0, 4 << 20)
        pro += [f"buffer_load_dwordx4 {v(XR+4*i,4)}, {v(vH)}, {q4(sH)}, s39 offen offset:{1024*i} {self.o.get('xt','nt')}" for i in range(4)]
        pro += srd(sC, 60, 0, 2048) + srd(sWM, 62, 0, 1024*12288) + [f"buffer_load_dwordx2 {v(CR,2)}, v81, {q4(sC)}, s36 offen"]
        pro += [f"buffer_load_dwordx4 {v(WR_+4*i,4)}, v80, {q4(sWM)}, s{4+i} offen nt" for i in range(4)]
        pro += srd(sWS, 68, 0, WS_USED) + [f"v_mov_b32 {v(vSent+i)}, -1" for i in range(4)] + L(f"""
        s_lshl_b32 s36, s2, 12
        s_add_u32 s36, s36, {WS_SENT}
        buffer_store_dwordx4 {v(vSent,4)}, v224, {q4(sWS)}, s36 offen sc1
        s_lshl_b32 s87, s38, 13
        s_lshl_b32 s37, s37, 8
        s_add_u32 s87, s87, s37
        s_add_u32 s87, s87, {WS_MP1}
        v_lshlrev_b32 v83, 8, v13
        v_lshl_add_u32 v83, v15, 5, v83
        v_lshrrev_b32 v13, 4, v0
        v_lshl_add_u32 v83, v13, 3, v83
        s_lshl_b32 s35, s38, 2
        s_add_u32 s35, s35, s{sWv}
        s_mul_i32 s{sMw}, s{sWv}, 2112
        s_add_u32 s{sMw}, s{sMw}, {WBASE}
        v_and_b32 v14, 15, v0
        v_lshlrev_b32 v84, 11, v14
        v_lshl_add_u32 v84, v13, 4, v84
        v_lshlrev_b32 v15, 4, v14
        s_lshr_b32 s36, s{sWv}, 1
        s_lshl_b32 s36, s36, 16
        s_and_b32 s37, s{sWv}, 1
        s_lshl_b32 s37, s37, 14
        s_add_u32 s36, s36, s37
        v_and_b32 v14, 1, v13
        v_lshl_add_u32 {v(vW0)}, v14, 17, v15
        v_lshrrev_b32 v14, 1, v13
        v_lshl_add_u32 {v(vW0)}, v14, 15, {v(vW0)}
        v_add_u32 {v(vW0)}, s36, {v(vW0)}
        v_add_u32 {v(vW1)}, {8192-1056}, {v(vW0)}
        s_lshl_b32 s4, s35, 17
        s_lshl_b32 s36, s3, 6
        s_add_u32 s4, s4, s36
        s_add_u32 s5, s4, 32768
        s_add_u32 s6, s4, 65536
        s_add_u32 s7, s4, 98304
        s_lshl_b32 s86, s2, 2
        s_add_u32 s86, s86, s{sWv}
        s_lshl_b32 s86, s86, 7
        s_lshl_b32 s36, s3, 8
        s_mov_b32 s{sOffW}, {(-32*8192) & 0xffffffff}""") + srd(sW, 46, "s36", 1023*8192+256)
        w0 = []
        for n in range(DW + 1): w0 += self.wdma(n)
        b2 = [f"buffer_load_dwordx4 {v(XC+4*i,4)}, v84, {q4(sH)}, s{4+i} offen {self.o.get('xct','')}" for i in range(4)]
        for n in range(W1): vm.issue(f"W{n}", 2)
        wb = self.o.get('wb', 0); wl = self.o.get('wl', 1)
        if not wl: b2 += w0[:4*W1]
        nb2 = sum('buffer_' in x for x in b2)
        pro += ["s_waitcnt vmcnt(6)"] + self.stamp() + (b2 if wb == 0 else []) + unpack(X, XR, 16)
        T = 176
        for r in range(2):
            b = X + 16*r; t = T + 4*r
            pro += [f"v_pk_add_f32 {v(t,2)}, {v(b,2)}, {v(b+2,2)}", f"v_pk_mul_f32 {v(t+2,2)}, {v(b,2)}, {v(b,2)}", f"v_pk_fma_f32 {v(t+2,2)}, {v(b+2,2)}, {v(b+2,2)}, {v(t+2,2)}"]
            for i in range(2, 8): pro += [f"v_pk_add_f32 {v(t,2)}, {v(t,2)}, {v(b+2*i,2)}", f"v_pk_fma_f32 {v(t+2,2)}, {v(b+2*i,2)}, {v(b+2*i,2)}, {v(t+2,2)}"]
        M, Sq = 184, 186
        pro += [f"v_add_f32 {v(M+r)}, {v(T+4*r)}, {v(T+4*r+1)}" for r in range(2)] + [f"v_add_f32 {v(Sq+r)}, {v(T+4*r+2)}, {v(T+4*r+3)}" for r in range(2)]
        pro += allreduce([M, M+1, Sq, Sq+1], [T, T+1, T+2, T+3]) + ln_scalars_n(M, Sq, 2, T, rcp=False)
        pro += L(f"""s_waitcnt lgkmcnt(0)
        s_add_u32 s85, s85, 1
        s_and_b32 s84, s85, 255
        v_cvt_pk_bf16_f32 {v(T)}, {v(M)}, {v(Sq)}
        v_mov_b32 {v(T+1)}, s85
        v_cvt_pk_bf16_f32 {v(T+2)}, {v(M+1)}, {v(Sq+1)}
        v_mov_b32 {v(T+3)}, s85
        s_add_u32 s36, s86, {WS_S1}
        buffer_store_dwordx4 {v(T,4)}, off, {q4(sWS)}, s36 sc1""") + self.hs() + (b2 if wb == 1 else [])
        y = 1 + (nb2 if wb < 2 else 0)
        pro += [f"s_waitcnt vmcnt({5+y})"] + unpack(116, CR, 2) + silu(116, 4, 120) + rndn(116, 4, 120)
        for i in range(4):
            pro += [f"s_waitcnt vmcnt({4-i+y})"] + unpack(128, WR_ + 4*i, 4)
            pro += [f"v_pk_{'fma' if i else 'mul'}_f32 {v(120+2*e,2)}, {v(128+2*e,2)}, {v(116+(i&2),2)}{', '+v(120+2*e,2) if i else ''} op_sel:[0,{i&1}{',0' if i else ''}] op_sel_hi:[1,{i&1}{',1' if i else ''}]" for e in range(4)]
        pro += red8(120) + ["ds_write_b64 v83, v[120:121]"] + self.hs() + [f"s_waitcnt vmcnt({y}) lgkmcnt(0)"] + self.hs()
        pro += L(f"""s_barrier
        s_cmp_lg_u32 s{sWv}, 0
        s_cbranch_scc1 {name}_np""") + [f"ds_read_b32 {v(120+i)}, v82 offset:{256*i}" for i in range(4)] + L(f"""
        s_waitcnt lgkmcnt(0)
        v_add_f32 v120, v120, v121
        v_add_f32 v122, v122, v123
        v_add_f32 v120, v120, v122
        v_add_u32 v120, 0x80, v120
        v_and_b32 v120, 0xffffff00, v120
        v_or_b32 v120, s84, v120
        buffer_store_dword v120, v82, {q4(sWS)}, s87 offen sc1
        {name}_np:""") + (b2 if wb == 2 else []) + self.stamp()
        su = [f"s_mul_i32 s{sMkv}, s{sWv}, {G}"]
        su += L(f"""s_lshl_b32 s36, s3, 19
        s_add_u32 s8, s42, s36
        s_addc_u32 s9, s43, 0
        s_sub_u32 s8, s8, {BIAS}
        s_subb_u32 s9, s9, 0
        s_mov_b32 s10, {BIAS + 524288}
        s_mov_b32 s11, 0x20000
        s_add_u32 s12, s44, s36
        s_addc_u32 s13, s45, 0
        s_sub_u32 s12, s12, {BIAS + 3*8192}
        s_subb_u32 s13, s13, 0
        s_mov_b32 s14, {BIAS + 3*8192 + 524288}
        s_mov_b32 s15, 0x20000""")
        su += srd(sX, 40, 0, 4 << 20) + srd(sG, 54, 0, 1024*7168) + srd(sWO, 48, 0, 8 << 20) + srd(sWR, 52, 0, 2048) + srd(sWD, 58, 0, 3584*2048)
        su += srd(sU, 56, 0, 1024*7168) + srd(sOUT, 64, 0, 4 << 20)
        su += L(f"""s_mov_b32 s{sOffKV}, {(-8192) & 0xffffffff}
        s_lshl_b32 s36, s{sWv}, 9
        s_add_u32 s36, s36, {BIAS}
        v_lshrrev_b32 v13, 4, v0
        v_and_b32 v15, 15, v0
        v_lshlrev_b32 v15, 4, v15
        v_lshl_add_u32 {v(vD0)}, v13, 11, v15
        v_add_u32 {v(vD0)}, s36, {v(vD0)}
        v_add_u32 {v(vD1)}, {(256-1056) & 0xffffffff}, {v(vD0)}
        v_add_u32 {v(vD2)}, {(-2080) & 0xffffffff}, {v(vD0)}
        v_add_u32 {v(vD3)}, {(256-3136) & 0xffffffff}, {v(vD0)}
        v_bfe_u32 v15, v0, 1, 2
        v_mul_u32_u24 {v(vKa)}, {G}, v15
        v_and_b32 v15, 1, v0
        v_mul_u32_u24 v15, 1056, v15
        v_add_u32 {v(vKa)}, {v(vKa)}, v15
        v_bfe_u32 v15, v0, 3, 1
        v_lshl_add_u32 {v(vKa)}, v15, 8, {v(vKa)}
        v_lshl_add_u32 {v(vKa)}, v13, 4, {v(vKa)}
        v_bfe_u32 v15, v0, 3, 2
        v_mul_u32_u24 {v(vVa)}, {G}, v15
        v_bfe_u32 v15, v0, 2, 1
        v_mul_u32_u24 v15, 1056, v15
        v_add_u32 {v(vVa)}, {v(vVa)}, v15
        v_lshrrev_b32 v15, 5, v0
        v_lshl_add_u32 {v(vVa)}, v15, 8, {v(vVa)}
        v_and_b32 v14, 3, v0
        v_lshl_add_u32 {v(vVa)}, v14, 3, {v(vVa)}
        v_add_u32 {v(vVa)}, 2080, {v(vVa)}
        v_add_u32 {v(vKa2)}, {3*SLOT}, {v(vKa)}
        v_add_u32 {v(vVa2)}, {3*SLOT}, {v(vVa)}
        v_bfe_u32 v13, v0, 2, 3
        v_mul_u32_u24 {v(vWa)}, 1056, v13
        v_lshl_add_u32 {v(vWa)}, v15, 8, {v(vWa)}
        v_lshl_add_u32 {v(vWa)}, v14, 4, {v(vWa)}
        v_add_u32 {v(vWa)}, {WBASE}, {v(vWa)}
        s_mov_b32 s{sCnt}, 0""")
        su += L(f"""v_lshrrev_b32 v13, 3, v0
        v_mul_u32_u24 {v(vBm)}, 12288, v13
        v_and_b32 v14, 7, v0
        v_lshl_add_u32 {v(vBm)}, v14, 4, {v(vBm)}
        s_lshl_b32 s36, s2, 2
        s_add_u32 s36, s36, s{sWv}
        s_lshl_b32 s{sAr}, s36, 13
        s_add_u32 s{sAr}, s{sAr}, {WS_AR}
        s_lshl_b32 s37, s36, 13
        v_and_b32 v13, 15, v0
        v_lshl_add_u32 {v(vBt)}, v13, 7, s37
        s_mov_b32 s78, 11
        s_lshr_b32 s37, s2, 6
        s_lshl_b32 s37, s37, 2
        s_add_u32 s37, s37, s{sWv}
        s_mul_i32 s{sBo0}, s37, {64*12288}
        s_and_b32 s38, s2, 63
        s_lshl_b32 s38, s38, 7
        s_add_u32 s{sBo0}, s{sBo0}, s38
        s_add_u32 s{sBo0}, s{sBo0}, 4096
        v_bfe_u32 v13, v0, 3, 2
        v_lshlrev_b32 v13, 3, v13
        v_lshl_add_u32 v13, v15, 2, v13
        v_bfe_u32 v14, v0, 1, 2
        v_add_u32 v13, v13, v14
        v_mul_u32_u24 {v(vBg)}, 7168, v13
        v_and_b32 v14, 1, v0
        v_lshl_add_u32 {v(vBg)}, v14, 4, {v(vBg)}
        s_and_b32 s36, s2, 7
        s_mul_i32 s36, s36, 28
        s_lshr_b32 s37, s2, 3
        s_add_u32 s36, s36, s37
        s_lshl_b32 s36, s36, 5
        s_mul_i32 s{sBo1}, s{sWv}, {256*7168}
        s_add_u32 s{sBo1}, s{sBo1}, s36
        s_cmp_ge_u32 s2, 224
        s_cselect_b32 s{sBo1}, 0x10000000, s{sBo1}
        s_mul_i32 s{sBm}, s{sWv}, 12288
        s_add_u32 s{sBm}, s{sBm}, {STG}
        s_mov_b32 s{sR}, 0
        s_mov_b32 s{sLim}, 6""")
        su += L(f"""v_and_b32 v13, 7, v0
        v_lshlrev_b32 v85, 13, v13
        v_bfe_u32 v14, v0, 3, 1
        v_lshl_add_u32 v85, v14, 12, v85
        v_lshrrev_b32 v15, 4, v0
        v_lshl_add_u32 v85, v15, 5, v85
        v_cvt_f32_u32 v88, v14
        v_lshlrev_b32 v86, 12, v14
        v_bfe_u32 v14, v0, 1, 2
        v_lshl_add_u32 v86, v14, 7, v86
        v_and_b32 v14, 1, v0
        v_lshl_add_u32 v86, v14, 3, v86
        v_and_b32 v14, 3, v0
        v_lshlrev_b32 v87, 12, v14
        v_bfe_u32 v14, v0, 2, 3
        v_lshl_add_u32 v87, v14, 9, v87
        s_lshl_b32 s20, s3, 7
        s_add_u32 s20, s20, {WS_MP1}
        s_lshr_b32 s36, s2, 5
        s_lshl_b32 s36, s36, 14
        s_lshl_b32 s21, s{sWv}, 10
        s_add_u32 s21, s21, s36
        s_add_u32 s21, s21, {WS_S1}
        s_add_u32 s22, s21, 8192
        s_lshl_b32 s23, s{sWv}, 7
        s_add_u32 s23, s23, s36
        s_add_u32 s23, s23, {WS_FL + 4}
        s_lshl_b32 s{sOffH}, s35, 12
        s_lshl_b32 s5, s3, 17
        s_add_u32 s5, s5, s{sOffH}
        s_add_u32 s5, s5, {WS_H}
        s_add_u32 s{sOffH}, s{sOffH}, {(WS_H - (1 << 17)) & 0xffffffff}
        s_add_u32 s86, s86, {WS_FL}
        v_bfe_u32 v15, v0, 1, 3
        v_lshlrev_b32 v231, 13, v15
        v_and_b32 v15, 1, v0
        v_lshl_add_u32 v231, v15, 7, v231
        s_lshl_b32 s36, s35, 16
        v_add_u32 v231, s36, v231""")
        MP, SR, AA = 96, 104, 112
        gl = [f"buffer_load_dwordx4 {v(MP+4*h,4)}, v85, {q4(sWS)}, s20 offen offset:{16*h} sc1" for h in range(2)]
        gl += [f"buffer_load_dwordx2 {v(SR+2*qb,2)}, v86, {q4(sWS)}, s{21+(qb&1)} offen offset:{512*(qb>>1)} sc1" for qb in range(4)]
        chk = [f"v_xor_b32 {v(MP+i)}, s84, {v(MP+i)}" for i in range(8)] + [f"v_xor_b32 {v(SR+2*i+1)}, s85, {v(SR+2*i+1)}" for i in range(4)]
        chk += [f"v_or3_b32 v80, {v(MP)}, {v(MP+1)}, {v(MP+2)}", f"v_or3_b32 v81, {v(MP+3)}, {v(MP+4)}, {v(MP+5)}", f"v_or3_b32 v80, v80, {v(MP+6)}, {v(MP+7)}",
                f"v_or3_b32 v89, {v(SR+1)}, {v(SR+3)}, {v(SR+5)}", "v_or_b32 v80, v80, v81", "v_and_b32 v80, 255, v80", f"v_or3_b32 v80, v80, v89, {v(SR+7)}", "v_cmp_ne_u32 vcc, 0, v80"]
        pro += su + self.hs() + ["s_waitcnt vmcnt(0)"] + (["s_barrier"] if self.o.get('gb', 1) else []) + self.hs() + gl + (w0[:4*W1] if wl else []) + unpack(XF, XC, 16)
        inl0, tr0 = self.poll(name, gl, chk, vm=2*W1 if wl else 0)
        pro0 = pro; pro = self.stamp()
        for m in ("quad_perm:[1,0,3,2]", "quad_perm:[2,3,0,1]", "row_half_mirror"):
            pro += [f"v_add_f32_dpp {v(MP+i)}, {v(MP+i)}, {v(MP+i)} {m} {DPP}" for i in range(8)]
        pro += [f"v_and_b32 {v(SR+2*i+1)}, 0xffff0000, {v(SR+2*i)}" for i in range(4)] + [f"v_rcp_f32 {v(SR+2*i+1)}, {v(SR+2*i+1)}" for i in range(4)]
        pro += [f"v_lshlrev_b32 {v(SR+2*i)}, 16, {v(SR+2*i)}" for i in range(4)]
        pro += rndn(MP, 8, AA) + [f"v_add_f32 {v(MP+i)}, v88, {v(MP+i)}" for i in range(8)] + rndn(MP, 8, AA)
        pro += [f"v_mov_b64 {v(AA+2*i,2)}, {v(MP+2*i,2)}" for i in range(4)]
        pro += [f"v_mov_b32_dpp {v(AA+i)}, {v(MP+i)} row_ror:8 row_mask:0xf bank_mask:0x3" for i in range(8)]
        pro += [f"v_mov_b32_dpp {v(MP+i)}, {v(MP+i)} row_ror:8 row_mask:0xf bank_mask:0xc" for i in range(8)]
        for qb in range(4):
            b = XF + 8*qb
            pro += [f"v_pk_add_f32 {v(b+2*i,2)}, {v(b+2*i,2)}, {v(SR+2*qb,2)} op_sel_hi:[1,0] neg_lo:[0,1] neg_hi:[0,1]" for i in range(4)]
            pro += [f"v_pk_mul_f32 {v(b+2*i,2)}, {v(b+2*i,2)}, {v(SR+2*qb,2)} op_sel:[0,1]" for i in range(4)]
            pro += [f"v_pk_fma_f32 {v(b+2*i,2)}, {v(b+2*i,2)}, {v(AA+2*i,2)}, {v(MP+2*i,2)}" for i in range(4)] + pack(XC + 4*qb, b, 4)
            pro += [f"buffer_store_dwordx4 {v(XC+4*qb,4)}, {v(vH)}, {q4(sWS)}, s5 offen offset:{1024*qb} sc1"]
        pro += ["v_mov_b32 v15, s85", "s_waitcnt vmcnt(0)", f"buffer_store_dword v15, off, {q4(sWS)}, s86 offset:4 sc1"]
        fl = [f"buffer_load_dword v14, v87, {q4(sWS)}, s23 offen sc1"]
        W2 = self.o.get('W2', DW + 1)
        for n in range(W1, W2): vm.issue(f"W{n}", 2)
        pro += self.stamp() + w0[4*W1:4*W2] + ["s_barrier"] + self.wreads(0) + (["s_waitcnt vmcnt(0)"] if self.o.get('pw', 0) & 1 else []) + fl
        inl, trc = self.poll(name, fl, ["v_cmp_ne_u32 vcc, s85, v14"])
        q = self.stamp()
        for n in range(self.o.get('qpre', 2)): q += self.hload(n); vm.issue(f"H{n}", 4)
        q += w0[4*W2:]
        for n in range(W2, DW + 1): vm.issue(f"W{n}", 2)
        for n in range(32):
            extra = {}; ev = 0
            bt = self.o.get('bites', ())
            if n in bt: extra[27] = [f"s_mov_b32 s36, {(bt.index(n)+1)*256*8192}", f"buffer_load_dword {v(vDum)}, v231, {q4(sW)}, s36 offen nt"]; ev = 1
            if 24 <= n <= 28:
                b = n - 30; d = self.dmas(True, b + LEAD - 1 >= 0); extra[18] = self.dma_setup(b); ev = len(d)
                for k, x in enumerate(d): extra[19 + 3*k] = [x]
            if n in (29, 30):
                o1 = self.osetup()[0]; h = (len(o1) + 1) // 2; part = o1[:h] if n == 29 else o1[h:]
                for k in range(8): extra[1 + 2*k] = part[2*k:2*k+2]
                spread(part[16:], extra, 17, 31, 2)
            if n == 31: extra[1] = self.osetup()[1]
            x = self.qstep(n, vm, extra, ev)
            if n in (0, 1, 2, 4, 6, 8, 12, 16, 20, 24, 28): x[1:1] = self.hs(3)
            q += x
        return pro0 + inl0 + pro + inl + q, pro0 + tr0 + pro + trc + q
    def attention(self, name):
        mid = self.stamp()
        mid += [f"s_mov_b32 s36, {f2u(math.log2(math.e) / math.sqrt(128.0))}", "s_waitcnt vmcnt(0) lgkmcnt(0)", "s_barrier"] + self.hs(2)
        mid += self.kreads(-2, VF) + self.kreads(-1, KF)
        mid += self.pack(lambda ks, qb, r: [f"v_accvgpr_write_b32 {a(Q(qb, ks) + i)}, {v(r + i)}" for i in range(4)], lambda qb: "s[36:37] op_sel_hi:[1,0]")
        mid += ["v_mov_b32 v13, 0x3f803f80"] + [f"v_accvgpr_write_b32 {a(ONES+i)}, v13" for i in range(4)]
        mid += [f"v_accvgpr_write_b32 {a(LB+i)}, 0" for i in range(16)] + self.hs(2)
        g = {i: [f"v_mov_b64 {v(OB+4*i,2)}, 0", f"v_mov_b64 {v(OB+4*i+2,2)}, 0"] for i in range(32)}
        g[0] += self.dma_setup(-1)
        for k, d in enumerate(self.dmas()): g[2 + 6 * k].append(d)
        mid += weave(self.qk(0, VF), g, self.sync(-1, True)) + self.hs(2)
        ex = self.exps(0); cv = self.cvts(0); kr = self.kreads(0)
        g = {i: [] for i in range(33)}
        g[0] += self.dma_setup(0)
        for k, d in enumerate(self.dmas()): g[1 + k].append(d)
        for e in range(32): g[min(32, 4 + e)].append(ex[e])
        for k in range(4): g[16 + 2*k].append(kr[k])
        g[32] = kr[4:8] + g[32] + ["s_nop 0"] + cv
        mid += weave(self.qk(1), g, self.sync(0, True))
        mid += [f"s_mov_b32 s{sCnt}, 0", f"s_branch {name}_entry"]
        nb_ = [self.bg(k)[1] for k in range(6)]
        vmx = lambda b: 8 + (sum(nb_[(b - 3 - j) % 6] for j in (1, 2, 3)) if self.o.get('exact', 1) else 0)
        body1 = [f"{name}_loop:"]
        for b in range(3, 7): body1 += self.slot(b, extra=self.bg(b - 3)[0], vm=vmx(b))
        body2 = [f"{name}_entry:"] + self.slot(7, extra=self.bg(4)[0]) + \
                self.slot(8, [f"s_add_u32 s{sCnt}, s{sCnt}, 1", f"s_cmp_lt_u32 s{sCnt}, s{sLim}", f"s_cbranch_scc1 {name}_loop"], extra=self.bg(5)[0], vm=vmx(8))
        mid[-1:-1] = self.hs(2) + ["s_waitcnt vmcnt(4)"] + self.hs(2)
        ev0 = [f"s_cmp_eq_u32 s{sLim}, 11", f"s_cbranch_scc1 {name}_exit"]
        ev = self.hs(2) + L(f"""s_cmp_lg_u32 s86, {WS_FL}
        s_cbranch_scc1 {name}_nt
        s_mov_b32 s5, {WS_TAG}
        v_mov_b32 v15, s85
        buffer_store_dword v15, off, {q4(sWS)}, s5 sc1
        {name}_nt:
        s_waitcnt lgkmcnt(0)""") + self.stg_reads(0) + (([f"v_lshl_add_u32 v15, s{sWv}, 6, v0"] + code_touch(f"{name}_exit", f"(({name}_slow-{name}_exit)>>7)", 15, vDum, 15, sp=38)) if self.o.get('ct', 1) else []) + (L(f"""s_lshr_b32 s5, s2, 3
        s_lshl_b32 s5, s5, 2
        s_add_u32 s5, s5, s{sWv}
        s_lshr_b32 s6, s5, 6
        s_lshl_b32 s6, s6, 21
        s_bfe_u32 s7, s5, 0x10005
        s_lshl_b32 s7, s7, {18 if self.o.get('NS', 2) < 4 else 17}
        s_add_u32 s6, s6, s7
        s_and_b32 s5, s5, 31
        s_lshl_b32 s5, s5, 12
        s_add_u32 s5, s5, s6
        s_bfe_u32 s6, s2, 0x10002
        s_lshl_b32 s6, s6, 22
        s_add_u32 s5, s5, s6
        v_and_b32 v13, 31, v0
        v_lshl_add_u32 {v(vBt)}, v13, 7, s5
        s_mov_b32 s78, {19 if self.o.get('NS', 2) < 4 else 18}""") if self.o.get('l2w', 1) else [f"v_mov_b32 {v(vBt)}, 0x10000000"]) + self.hs(2) + [f"s_mov_b32 s{sLim}, 11", f"s_branch {name}_loop"]
        ex_ = [f"{name}_exit:"] + self.hs(2)
        return mid + body1 + body2 + ev0 + ev + ex_, mid + body2 + body1 + body2 + ev0 + ev + body1 + body2 + ev0 + ex_
    def kb(self, n):
        NS = self.o.get('NS', 2)
        if n < 0: return -1
        if n < 8 * NS: return 4 * (n // NS) + n % NS
        m = n - 8 * NS; return 4 * (m // (4 - NS)) + NS + m % (4 - NS)
    def owd(self, n):
        return [f"s_add_u32 m0, s{sMw}, {((n + 1) % 8) * 2 * WBLK}", f"s_add_u32 s{sOffW}, s{sOffW}, {((self.kb(n) - self.kb(n-1)) * 32*2048) & 0xffffffff}"] + \
               [f"buffer_load_dwordx4 {v(6+i)}, {q4(sWO)}, s{sOffW} offen offset:{1056*i} lds" for i in range(4)]
    def obl(self, n): return [f"s_add_u32 s{sOffH}, s{sOffH}, {((self.kb(n) - self.kb(n-1)) << 17) & 0xffffffff}"] + \
                             [f"buffer_load_dwordx4 {a((n%8)*16+qb*4,4)}, {v(10 if qb < 2 else 11)}, {q4(sWS)}, s{sOffH} offen offset:{1024*(qb&1)} sc1" for qb in range(4)]
    def owr(self, n):
        m = (n + 1) % 8
        return [f"ds_read_b64_tr_b16 {v(SB+(n&1)*32+nb*4+2*tt,2)}, {v(1 + (nb >> 2) + 2*(m >> 2))} offset:{(m%4)*2*WBLK + 512*tt + 64*((nb>>1)&1) + 8*(nb&1)}" for nb in range(8) for tt in range(2)]
    def osetup(self):
        return L(f"""s_and_b32 s16, s2, 3
        s_lshl_b32 s16, s16, 2
        s_lshr_b32 s36, s2, 6
        s_add_u32 s16, s16, s36
        s_bfe_u32 s17, s2, 0x40002
        s_and_b32 s37, s{sWv}, 1
        s_lshr_b32 s38, s{sWv}, 1
        s_and_b32 s39, s17, 1
        s_lshl_b32 s19, s39, 1
        s_add_u32 s19, s19, s38
        s_lshl_b32 s18, s16, 2
        s_lshl_b32 s36, s37, 1
        s_add_u32 s18, s18, s36
        s_add_u32 s18, s18, s38
        s_mul_i32 s4, s38, {WBLK}
        s_mul_i32 s36, s37, 4224
        s_add_u32 s{sMw}, s4, s36
        s_lshl_b32 s36, s39, 7
        s_add_u32 s4, s4, s36
        s_sub_u32 s4, s4, {WBASE}
        v_add_u32 v254, s4, {v(vWa)}
        s_lshl_b32 s36, s39, 8
        s_sub_u32 s88, 128, s36
        s_lshl_b32 s{sOffW}, s19, 21
        s_lshr_b32 s36, s17, 1
        s_lshl_b32 s36, s36, 8
        s_add_u32 s{sOffW}, s{sOffW}, s36
        s_sub_u32 s{sOffW}, s{sOffW}, {32*2048}
        v_lshrrev_b32 v14, 4, v0
        v_and_b32 v13, 15, v0
        v_lshlrev_b32 v252, 14, v14
        v_lshl_add_u32 v252, v13, 4, v252
        s_lshl_b32 s36, s37, 13
        v_add_u32 v252, s36, v252
        s_lshl_b32 s36, s38, 11
        v_add_u32 v10, s36, {v(vH)}
        v_xor_b32 v11, 2048, v10
        s_lshr_b32 s36, s18, 1
        s_lshl_b32 s{sOffH}, s36, 12
        s_lshl_b32 s37, s19, 22
        s_add_u32 s{sOffH}, s{sOffH}, s37
        s_add_u32 s{sOffH}, s{sOffH}, {WS_O - (1 << 17)}
        s_lshr_b32 s20, s36, 2
        s_lshl_b32 s20, s20, 14
        s_and_b32 s37, s36, 3
        s_lshl_b32 s37, s37, 7
        s_add_u32 s20, s20, s37
        s_lshl_b32 s37, s19, 10
        s_add_u32 s20, s20, s37
        s_add_u32 s20, s20, {WS_FL}
        v_and_b32 v13, 3, v0
        v_lshlrev_b32 v253, 12, v13
        v_bfe_u32 v13, v0, 2, 1
        v_lshl_add_u32 v253, v13, 9, v253
        s_lshl_b32 s21, s{sRb}, 12
        s_lshl_b32 s37, s{sHead}, 19
        s_add_u32 s21, s21, s37
        s_add_u32 s21, s21, {WS_O}
        s_lshr_b32 s36, s2, 6
        s_lshl_b32 s36, s36, 2
        s_add_u32 s36, s36, s{sWv}
        s_lshl_b32 s23, s36, 7
        s_lshl_b32 s22, s36, 14
        s_and_b32 s37, s2, 63
        s_lshl_b32 s37, s37, 8
        s_add_u32 s22, s22, s37
        s_add_u32 s22, s22, {WS_MP2}"""), ["v_lshlrev_b32 v5, 4, v14"]
    def transition(self, name):
        D = self.o.get('DO', 5); self.vm = vm = VM(); NS = self.o.get('NS', 2); WE0 = self.o.get('WE0', 3); WE1 = self.o.get('WE1', 5)
        w = [self.owd(n) for n in range(D + 1)]
        t = ["s_waitcnt vmcnt(0) lgkmcnt(0)", "s_barrier"] + self.hs(2) + self.vreads(63)
        t += ["v_mov_b32 v6, v252"] + [f"v_add_u32 {v(6+i)}, {i*(2048-1056)}, v252" for i in range(1, 4)]
        ex = self.exps(1); cv = self.cvts(1); vr = self.vreads(64, KF)
        w0 = sum(w[:WE0], [])
        for e in range(12): t += [ex[e]] + w0[e:e+1]
        t += ["s_waitcnt lgkmcnt(0)"]
        mf = self.pv(0); g = {i: [] for i in range(len(mf))}
        for e in range(12, 32): g[e - 12].append(ex[e])
        for k, x in enumerate(w0[12:]): g[2 * k].append(x)
        for k in range(8): g[20 + k] += [vr[2*k], vr[2*k+1]]
        for n in range(16): g[min(len(mf) - 1, 20 + n)].append(cv[n])
        t += weave(mf, g) + ["s_waitcnt lgkmcnt(0)", "s_barrier"] + self.hs(2)
        misc = sum(w[WE0:WE1], []) + [f"buffer_load_dwordx4 {a(SI+4*i,4)}, v5, {q4(sC)}, s23 offen offset:{64*i}" for i in range(2)]
        if self.o.get('ct', 1): misc += [f"v_lshl_add_u32 v15, s{sWv}, 6, v0"] + code_touch(f"{name}_o", f"(({name}_slow-{name}_o)>>7)", 14, vDum, 15, sp=38)
        g = {}; spread(misc, g, 0, 23, 1)
        for n in range(WE1): vm.issue(f"W{n}", 4)
        chk = [f"v_accvgpr_read_b32 {v(vL+qb)}, {a(LB+4*qb)}" for qb in range(4)] + L(f"""v_min_f32 v13, {v(vL)}, {v(vL+1)}
        v_min3_f32 v13, v13, {v(vL+2)}, {v(vL+3)}
        v_add_f32 v14, {v(vL)}, {v(vL+1)}
        v_add_f32 v15, {v(vL+2)}, {v(vL+3)}
        v_add_f32 v14, v14, v15
        v_cmp_nle_f32 vcc, {f2u(2.0**-30)}, v13
        s_mov_b64 s[36:37], vcc
        v_cmp_nge_f32 vcc, {f2u(2.0**30)}, v14
        s_mov_b32 s6, 0""") + [f"v_rcp_f32 {v(vL+qb)}, {v(vL+qb)}" for qb in range(4)] + ["s_or_b64 s[36:37], s[36:37], vcc"]
        spread(chk, g, 24, 35, 2)
        t += weave(self.pv(1, KF), g) + [f"s_cbranch_scc1 {name}_slow", f"{name}_ret:"] + self.stamp()
        late = []
        def st(sidx, qb, r):
            x = ([f"s_add_u32 s36, s21, {sidx << 17}"] if qb == 0 else []) + [f"buffer_store_dwordx4 {v(r,4)}, {v(vH)}, {q4(sWS)}, s36 offen offset:{1024*qb} sc1"]
            if sidx < NS: return x
            late.extend(x); return []
        t += self.pack(st, lambda qb: f"{v(vL + (qb & 2), 2)} op_sel:[0,{qb & 1}] op_sel_hi:[1,{qb & 1}]")
        t += ["v_mov_b32 v15, s85", "s_waitcnt vmcnt(0)", f"buffer_store_dword v15, off, {q4(sWS)}, s86 sc1"] + self.stamp()
        t += ["s_cmp_lg_u32 s6, 0", f"s_cbranch_scc1 {name}_nostg"] + self.stg_reads(1) + [f"{name}_nostg:"]
        t += ["v_mov_b32 v1, v254", "v_add_u32 v2, s88, v254", f"v_add_u32 v3, {8*WBLK}, v1", f"v_add_u32 v4, {8*WBLK}, v2"]
        t += [f"v_accvgpr_read_b32 {v(OB+i)}, {a(SI+i)}" for i in range(8)] + unpack(OB+8, OB, 8) + silu(OB+8, 16, OB+24) + pack(OB, OB+8, 8)
        fl = [f"buffer_load_dword v15, v253, {q4(sWS)}, s20 offen sc1"]
        t += ["s_waitcnt vmcnt(0) lgkmcnt(0)"] + fl
        t += [f"{MF} {v(PB+4*nb,4)}, {a(WM+16*kk+4*nb,4)}, {v(OB+4*kk,4)}, {v(PB+4*nb,4) if kk else 0}" for kk in range(2) for nb in range(4)]
        inl, tr = self.poll(name, fl, ["v_cmp_ne_u32 vcc, s85, v15"])
        t2 = self.stamp()
        for n in range(self.o.get('opre', 2)): t2 += self.obl(n); vm.issue(f"B{n}", 4)
        t2 += late; vm.issue("O2", 16 - 4 * NS)
        t2 += ["s_barrier"] + self.owr(0)
        for n in range(WE1, D + 1): t2 += w[n]; vm.issue(f"W{n}", 4)
        t2 += [f"{name}_o:"]
        return t + inl + t2, t + tr + t2
    def ostep(self, n, extra=None, extra_vm=(), need=()):
        D = self.o.get('DO', 5); vm = self.vm
        mf = [f"{MF} {v(A(qb,nb),4)}, {v(SB+(n&1)*32+nb*4,4)}, {a((n%8)*16+qb*4,4)}, {v(A(qb,nb),4) if n else 0}" for nb in range(8) for qb in range(4)]
        b2 = self.o.get('ob2', 0); assert D <= 7 - b2
        cnt = vm.need(f"B{n}", *([f"W{min(n+1,31)}"] if not b2 else [f"W{min(n+2,31)}", f"W{min(n+1,31)}"] if n % 2 == 0 else []), *need)
        g = {i: [] for i in range(32)}
        rs = ramp(n, D, self.o.get('opre', 2))
        for j, m in enumerate(rs):
            b = self.obl(m)
            if len(rs) == 1:
                g[1] += [b[0]]
                for k in range(4): g[3 + 4*k].append(b[1+k])
            else:
                g[1 + 8*j] += [b[0]]
                for k in range(4): g[1 + 8*j + 2*k] += [b[1 + k]]
            vm.issue(f"B{m}", 4)
        if n + D + 1 <= 31:
            w = self.owd(n + D + 1); g[0] += w[0:2]
            for k in range(4): g[19 + 3*k].append(w[2+k])
            vm.issue(f"W{n+D+1}", 4)
        for t in extra_vm: vm.issue(t)
        if n < 31:
            r = self.owr(n + 1)
            for k in range(8): g[2 + 2*k] += r[2*k:2*k+2]
        if extra:
            for k, e in extra.items(): g[k] += e
        return weave(mf, g, [f"s_waitcnt vmcnt({cnt}) lgkmcnt(0)"] + (["s_barrier"] if n < 31 and not (b2 and n % 2) else []))
    def oproj(self, name):
        D = self.o.get('DO', 5)
        XR, WR, MP = 208, 224, 232
        su = L(f"""v_and_b32 v15, 15, v0
        v_lshl_add_u32 v13, v15, 11, v5
        v_lshlrev_b32 v14, 10, v5
        v_lshl_add_u32 v14, v15, 4, v14
        s_lshl_b32 s20, s18, 16
        s_lshl_b32 s22, s17, 7
        s_add_u32 s20, s20, s22
        s_add_u32 s21, s20, 32768
        s_lshl_b32 s23, s{sWv}, 12
        s_lshl_b32 s36, s17, 8
        s_add_u32 s23, s23, s36
        s_add_u32 s36, s23, {WS_MP2}
        s_add_u32 s37, s23, {WS_MP2 + 65536}
        s_add_u32 s38, s23, {WS_MP2 + 131072}
        s_add_u32 s39, s23, {WS_MP2 + 196608}
        s_sub_u32 s23, s{sAr}, {WS_AR}
        s_lshr_b32 s23, s23, 6
        s_xor_b32 s23, s23, 2048
        s_add_u32 s23, s23, {WS_FL}""")
        mpl = [f"buffer_load_dwordx4 {v(MP+4*i,4)}, v14, {q4(sWS)}, s{36+i} offen sc1" for i in range(4)] + [f"buffer_load_dword v248, off, {q4(sWS)}, s23 sc1"]
        el = mpl + [f"buffer_load_dwordx4 {v(WR+4*sx,4)}, v5, {q4(sWR)}, s22 offen offset:{64*sx}" for sx in range(2)]
        el += [f"buffer_load_dwordx4 {v(XR+(q*2+sx)*4,4)}, v13, {q4(sX)}, s{20+q} offen offset:{64*sx}" for q in range(2) for sx in range(2)]
        dsu = L(f"""s_and_b32 s5, s2, 7
        s_mul_i32 s5, s5, 28
        s_lshr_b32 s6, s2, 3
        s_add_u32 s5, s5, s6
        s_lshl_b32 s5, s5, 15
        s_lshl_b32 s6, s{sWv}, 9
        s_add_u32 s5, s5, s6
        s_cmp_ge_u32 s2, 224
        s_cselect_b32 s5, 0x10000000, s5
        s_lshl_b32 s6, s{sWv}, 13
        s_add_u32 s6, s6, {LDN}
        v_lshrrev_b32 v6, 5, v0
        v_lshlrev_b32 v6, 11, v6
        v_and_b32 v7, 31, v0
        v_lshl_add_u32 v6, v7, 4, v6""")
        dd = [[f"s_add_u32 m0, s6, {1024*i}", "s_nop 0", f"buffer_load_dwordx4 v6, {q4(sWD)}, s5 offen lds {self.o.get('ntd','nt')}", "s_add_u32 s5, s5, 4096"] for i in range(8)]
        mv = [f"v_add_f32 {v(MP+e)}, {v(MP+e)}, {v(MP+4+e)}" for e in range(4)] + [f"v_add_f32 {v(MP+8+e)}, {v(MP+8+e)}, {v(MP+12+e)}" for e in range(4)]
        mv += [f"v_add_f32 {v(MP+e)}, {v(MP+e)}, {v(MP+8+e)}" for e in range(4)] + allreduce([MP, MP+1, MP+2, MP+3], [MP+4, MP+5, MP+6, MP+7], lo=16)
        mv += rndn(MP, 4, MP+4) + [f"s_cmp_eq_u32 s{sWv}, 2", "s_cselect_b32 s36, 1.0, 0"] + [f"v_add_f32 {v(MP+e)}, s36, {v(MP+e)}" for e in range(4)] + rndn(MP, 4, MP+4)
        mv += [f"s_lshl_b32 s36, s{sWv}, 8", f"s_add_u32 s36, s36, {LV}", "v_lshl_add_u32 v7, v15, 4, s36", f"ds_write_b128 v7, {v(MP,4)}"]
        t = []; tr = []; e0 = self.o.get('e0', 16)
        mps = ["v_and_b32 v13, 15, v0", "v_lshl_add_u32 v13, v13, 26, v5"] + [f"buffer_store_dwordx4 {v(PB+4*nb,4)}, v13, {q4(sWS)}, s22 offen offset:{64*nb} sc1" for nb in range(4)]
        for n in range(32):
            extra = {}; evm = []; need = ()
            if n == 3: extra[17] = mps[:2]
            if n in (4, 5): extra[29] = [mps[2*n-6]]; extra[31] = [mps[2*n-5]]; evm = ["MP"] * 2
            if n == e0 - 1:
                for k, gp in enumerate((5, 9, 13, 17, 18, 20, 21, 23, 24, 26)): extra[gp] = su[2*k:2*k+2]
            if e0 <= n < e0 + 6:
                x = el[2*(n-e0):2*(n-e0)+2]; extra[29] = x[:1]; extra[31] = x[1:]; evm = ["EL"] * len(x)
            NS = self.o.get('NS', 2); nchk = 8 * NS - D; nst = self.o.get('f2s', 2); nld = nchk - self.o.get('f2l', 3)
            f2 = [f"buffer_load_dword v15, v253, {q4(sWS)}, s20 offen offset:8 sc1"]
            if NS < 4 and n == nst: need = ("O2",); extra[29] = ["v_mov_b32 v14, s85", f"buffer_store_dword v14, off, {q4(sWS)}, s86 offset:8 sc1"]; evm = ["F"]
            if NS < 4 and n == nld: extra.setdefault(30, []).extend(f2); evm = evm + ["F2"]
            if NS < 4 and n == nchk:
                inl, trc = self.poll(name, f2, ["v_cmp_ne_u32 vcc, s85, v15"], vm=self.vm.need("F2"))
                t += inl; tr += trc
            if n == 27: spread(dsu, extra, 18, 31, 2)
            if n in (28, 29, 30):
                x = dd[3*(n-28):3*(n-28)+3]
                for i, d in enumerate(x): extra[3 + 4*i] = [d[0]]; extra[5 + 4*i] = d[2:]
                evm = ["DN"] * len(x)
            if n == 28:
                inl, trc = self.poll(name, mpl, ["v_cmp_ne_u32 vcc, s85, v248", "v_mov_b32 v249, 0", "s_nop 0", "v_cndmask_b32 v248, 0, -1, vcc"] + anysent(MP, 18, 8, 9), vm=self.vm.need("EL"))
                t += inl; tr += trc
            if n in (28, 29, 30):
                h = (len(mv) + 2) // 3; spread(mv[h*(n-28):h*(n-27)], extra, 17, 31, 2)
            x = self.ostep(n, extra, evm, need)
            if n in (0, 1, 2, 4, 6, 8, 12, 16, 20, 24, 28): x[1:1] = self.hs(4)
            t += x; tr += x
        st = self.stamp()
        return t + st, tr + st
    def tail(self, name):
        XR, WR = 208, 224
        GA, SBv, CB, GB = 144, 160, 176, 192
        SND, RCV = 192, 232
        K, XF, WF32, U = OB, 48, 80, 112
        t = []; tr = []
        def add(x): t.extend(x); tr.extend(x)
        def addp(p): t.extend(p[0]); tr.extend(p[1])
        add(L(f"""s_lshl_b32 s36, s{sWv}, 14
        v_add_u32 v7, s36, {v(vH)}
        v_xor_b32 v8, 32768, v7
        s_xor_b32 s37, s{sAr}, {4 << 15}
        s_barrier"""))
        order = [(q, nb) for half in (1, 0) for q in range(2) for nb in range(4*half, 4*half + 4)]
        add([f"ds_write_b128 v7, {v(A(2+q,nb),4)} offset:{1024*(q*8+nb)}" for q, nb in order] + ["s_waitcnt lgkmcnt(0)", "s_barrier"])
        add([f"ds_read_b128 {v(A(2+q,nb),4)}, v8 offset:{1024*(q*8+nb)}" for q, nb in order[:12]])
        add(["v_lshlrev_b32 v9, 1, v5", f"v_add_u32 v9, {LV}, v9", "s_waitcnt lgkmcnt(4)"])
        add([f"ds_read_b128 {v(A(2+q,nb),4)}, v8 offset:{1024*(q*8+nb)}" for q, nb in order[12:]])
        for q in range(2):
            b = A(q, 4)
            add([f"v_pk_add_f32 {v(b+2*i,2)}, {v(b+2*i,2)}, {v(b+64+2*i,2)}" for i in range(8)] + pack(SND + 8*q, b, 8))
            add([f"buffer_store_dwordx4 {v(SND+8*q+4*i,4)}, {v(vH)}, {q4(sWS)}, s37 offen offset:{1024*(2*q+i)} sc1" for i in range(2)])
        xl = [f"buffer_load_dwordx4 {v(RCV+4*i,4)}, {v(vH)}, {q4(sWS)}, s{sAr} offen offset:{1024*i} sc1" for i in range(4)]
        add(["s_waitcnt lgkmcnt(0)"])
        for vec in range(3): add([f"ds_read_b128 {v(GA+16*vec+4*k,4)}, v9 offset:{256*vec+128*(k>>1)+16*(k&1)}" for k in range(4)])
        add([f"v_pk_add_f32 {v(K+2*i,2)}, {v(K+2*i,2)}, {v(K+64+2*i,2)}" for i in range(8)])
        add([f"v_pk_add_f32 {v(K+16+2*i,2)}, {v(K+32+2*i,2)}, {v(K+96+2*i,2)}" for i in range(8)])
        add(([] if self.o.get('pw', 0) & 4 else xl) + unpack(XF, XR, 16) + unpack(WF32, WR, 8) + ["s_waitcnt lgkmcnt(0)"])
        add([f"ds_read_b128 {v(GB+4*k,4)}, v9 offset:{768+128*(k>>1)+16*(k&1)}" for k in range(4)])
        add([f"v_pk_fma_f32 {v(K+2*i,2)}, {v(K+2*i,2)}, {v(GA+(2*i&15),2)}, {v(XF+2*i,2)}" for i in range(16)])
        R = 208
        add([f"v_mul_f32 {v(R+7)}, {v(SBv)}, {v(WF32)}"] + [f"v_fmac_f32 {v(R+7)}, {v(SBv+i)}, {v(WF32+i)}" for i in range(1, 16)])
        add([f"v_pk_mul_f32 {v(WF32+2*i,2)}, {v(CB+2*i,2)}, {v(WF32+2*i,2)}" for i in range(8)])
        add([f"v_add_f32 {v(R+3)}, {v(WF32)}, {v(WF32+1)}"] + [f"v_add_f32 {v(R+3)}, {v(R+3)}, {v(WF32+i)}" for i in range(2, 16)])
        add(L(f"""s_lshl_b32 s36, s18, 13
        s_add_u32 s36, s36, {WS_ST}
        s_add_u32 s37, s36, 4096
        s_lshl_b32 s38, s17, 9
        s_add_u32 s38, s38, s36
        v_lshlrev_b32 v7, 3, v0"""))
        if self.o.get('pw', 0) & 4: add(["s_waitcnt vmcnt(0)"] + xl)
        addp(self.poll(name, xl, anysent(RCV, 16, 8, 9)))
        add(self.stamp())
        add(unpack(U, RCV, 16) + [f"v_pk_fma_f32 {v(K+2*i,2)}, {v(U+2*i,2)}, {v(GA+(2*i&15),2)}, {v(K+2*i,2)}" for i in range(16)] + rndn(K, 32, 96))
        for q in range(2):
            b = K + 16*q; r = 112 + 6*q
            add([f"v_pk_add_f32 {v(r,2)}, {v(b,2)}, {v(b+2,2)}", f"v_pk_mul_f32 {v(r+2,2)}, {v(b,2)}, {v(b,2)}", f"v_pk_mul_f32 {v(r+4,2)}, {v(b,2)}, {v(WF32,2)}"])
            for i in range(1, 8):
                if i > 1: add([f"v_pk_add_f32 {v(r,2)}, {v(r,2)}, {v(b+2*i,2)}"])
                add([f"v_pk_fma_f32 {v(r+2,2)}, {v(b+2*i,2)}, {v(b+2*i,2)}, {v(r+2,2)}", f"v_pk_fma_f32 {v(r+4,2)}, {v(b+2*i,2)}, {v(WF32+2*i,2)}, {v(r+4,2)}"])
            add([f"v_add_f32 {v(R+4*q+k)}, {v(r+2*k)}, {v(r+2*k+1)}" for k in range(3)])
        add(["s_nop 1"])
        for r in (R, R+4): add([f"v_permlane32_swap_b32 {v(r)}, {v(r+2)}", f"v_permlane32_swap_b32 {v(r+1)}, {v(r+3)}"])
        for r in (R, R+4): add([f"v_add_f32 {v(r)}, {v(r)}, {v(r+2)}", f"v_add_f32 {v(r+1)}, {v(r+1)}, {v(r+3)}"])
        add(["s_nop 1"] + [f"v_permlane16_swap_b32 {v(r)}, {v(r+1)}" for r in (R, R+4)] + [f"v_add_f32 {v(R)}, {v(R)}, {v(R+1)}", f"v_add_f32 {v(R+1)}, {v(R+4)}, {v(R+5)}"])
        SL = 48
        sl = [f"buffer_load_dwordx2 {v(SL+2*i,2)}, v7, {q4(sWS)}, s{36+(i>>3)} offen offset:{512*(i&7)} sc1" for i in range(16)]
        add([f"buffer_store_dwordx2 {v(R,2)}, v7, {q4(sWS)}, s38 offen sc1"] + ([] if self.o.get('pw', 0) & 8 else sl))
        add(L(f"""v_lshrrev_b32 v8, 2, v0
        v_lshlrev_b32 v8, 9, v8
        v_and_b32 v9, 3, v0
        v_lshl_add_u32 v8, v9, 3, v8
        v_add_u32 v8, s6, v8"""))
        dn = [f"ds_read_b64_tr_b16 {a(WM+2*i,2)}, v8 offset:{32*i}" for i in range(16)]
        add(dn[:8] + ["s_waitcnt lgkmcnt(4)"] + dn[8:])
        add(L(f"""s_lshl_b32 s39, s18, 5
        s_sub_u32 s39, 2047, s39
        v_sub_u32 v10, s39, v15
        v_subrev_u32 v11, 16, v10"""))
        if self.o.get('pw', 0) & 8: add(["s_waitcnt vmcnt(0)"] + sl)
        addp(self.poll(name, sl, anysent(SL, 32, 8, 9)))
        add(self.stamp())
        for w in (16, 8, 4, 2): add([f"v_pk_add_f32 {v(SL+2*i,2)}, {v(SL+2*i,2)}, {v(SL+w+2*i,2)}" for i in range(w // 2)])
        M, Sq, S3, TC = SL, SL + 2, SL + 4, SL + 6
        add([f"v_mov_b64 {v(S3,2)}, {v(M,2)}", "s_nop 1", f"v_permlane32_swap_b32 {v(M)}, {v(S3)}", f"v_permlane32_swap_b32 {v(M+1)}, {v(S3+1)}",
             f"v_mov_b64 {v(Sq,2)}, {v(M,2)}", f"v_mov_b64 {v(TC,2)}, {v(S3,2)}", "s_nop 0"])
        add([f"v_permlane16_swap_b32 {v(x+i)}, {v(y+i)}" for x, y in ((M, Sq), (S3, TC)) for i in range(2)])
        add(ln_scalars_n(M, Sq, 2, 8))
        add([f"v_fma_f32 {v(S3+i)}, -{v(M+i)}, {v(TC)}, {v(S3+i)}" for i in range(2)] + [f"v_fma_f32 {v(S3+i)}, {v(S3+i)}, {v(Sq+i)}, {v(TC+1)}" for i in range(2)])
        for i in range(2):
            add([f"v_ashrrev_i32 v8, 31, {v(S3+i)}", "v_or_b32 v8, 0x80000000, v8", f"v_xor_b32 v8, {v(S3+i)}, v8", "v_and_b32 v8, 0xfffff800, v8", f"v_or_b32 {v(10+i)}, v8, {v(10+i)}"])
        T1 = 248
        mrg = [f"v_max_u32 {v(T1+1)}, {v(T1+1)}, {v(T1+3)}", f"v_med3_u32 {v(T1+1)}, {v(T1)}, {v(T1+2)}, {v(T1+1)}", f"v_max_u32 {v(T1)}, {v(T1)}, {v(T1+2)}"]
        dppm = []
        for sh in (8, 4, 2, 1): dppm += ["s_nop 1", f"v_mov_b32_dpp {v(T1+2)}, {v(T1)} row_ror:{sh} {DPP}", f"v_mov_b32_dpp {v(T1+3)}, {v(T1+1)} row_ror:{sh} {DPP}"] + mrg
        add([f"v_max_u32 {v(T1)}, v10, v11", f"v_min_u32 {v(T1+1)}, v10, v11"] + dppm)
        add(L(f"""s_cmp_lg_u32 s17, 0
        s_cbranch_scc1 {name}_nokey
        s_lshl_b32 s36, s18, 7
        s_add_u32 s36, s36, {WS_KEY}
        v_mov_b32 v8, 0
        buffer_store_dwordx2 {v(T1,2)}, v8, {q4(sWS)}, s36 offen sc1
        {name}_nokey:"""))
        H, HP = 64, 96
        for q in range(2):
            add([f"v_pk_add_f32 {v(H+16*q+2*i,2)}, {v(K+16*q+2*i,2)}, {v(M,2)} op_sel:[0,{q}] op_sel_hi:[1,{q}] neg_lo:[0,1] neg_hi:[0,1]" for i in range(8)])
            add([f"v_pk_mul_f32 {v(H+16*q+2*i,2)}, {v(H+16*q+2*i,2)}, {v(Sq,2)} op_sel:[0,{q}] op_sel_hi:[1,{q}]" for i in range(8)])
            add([f"v_pk_fma_f32 {v(H+16*q+2*i,2)}, {v(H+16*q+2*i,2)}, {v(CB+2*i,2)}, {v(SBv+2*i,2)}" for i in range(8)] + pack(HP + 8*q, H + 16*q, 8))
        add([f"s_add_u32 s36, s{sAr}, 6144", "v_add_u32 v9, 128, v5"])
        for q in range(2):
            add(L(f"""v_cmp_eq_u32 s[38:39], {v(10+q)}, {v(T1)}
            v_cmp_eq_u32 vcc, {v(10+q)}, {v(T1+1)}
            s_nop 1
            v_cndmask_b32 v8, v5, v9, vcc
            s_or_b64 exec, s[38:39], vcc
            s_cbranch_execz {name}_nc{q}
            buffer_store_dwordx4 {v(HP+8*q,4)}, v8, {q4(sWS)}, s36 offen sc1
            buffer_store_dwordx4 {v(HP+8*q+4,4)}, v8, {q4(sWS)}, s36 offen offset:64 sc1
            {name}_nc{q}:
            s_mov_b64 exec, -1"""))
        kl = [f"buffer_load_dwordx2 {v(T1,2)}, v7, {q4(sWS)}, s37 offen sc1"]
        add([f"s_mov_b32 s37, {WS_KEY}", "v_lshlrev_b32 v7, 7, v0"] + kl + unpack(H, HP, 16) + ["s_waitcnt lgkmcnt(0)"])
        OP = 208
        add([f"v_pk_mul_f32 {v(U+2*i,2)}, {v(H+2*i,2)}, {v(GB+(2*i&15),2)}" for i in range(16)] + rndn(U, 32, OP))
        add([f"v_pk_add_f32 {v(U+2*i,2)}, {v(U+2*i,2)}, {v(K+2*i,2)}" for i in range(16)] + pack(OP, U, 16))
        addp(self.poll(name, kl, anysent(T1, 2, 8, 9)))
        add(self.stamp())
        add(dppm)
        for pl in ("v_permlane16_swap_b32", "v_permlane32_swap_b32"):
            add([f"v_mov_b64 {v(T1+2,2)}, {v(T1,2)}", "s_nop 1", f"{pl} {v(T1)}, {v(T1+2)}", f"{pl} {v(T1+1)}, {v(T1+3)}"] + mrg)
        ost = [f"buffer_store_dwordx4 {v(OP+(q*2+sx)*4,4)}, v13, {q4(sOUT)}, s{20+q} offen offset:{64*sx} {self.o.get('sto','')}" for q in range(2) for sx in range(2)]
        add(L(f"""s_nop 0
        v_readfirstlane_b32 s9, {v(T1+1)}
        v_readfirstlane_b32 s8, {v(T1)}
        s_andn2_b32 s11, 2047, s9
        s_andn2_b32 s10, 2047, s8
        s_cmp_ge_u32 s2, 224
        s_cbranch_scc1 {name}_nomoe"""))
        for i in range(2):
            add(L(f"""s_lshr_b32 s36, s{10+i}, 9
            s_bfe_u32 s37, s{10+i}, 0x20007
            s_lshl_b32 s37, s37, 6
            s_add_u32 s36, s36, s37
            s_lshl_b32 s36, s36, 2
            s_bfe_u32 s37, s{10+i}, 0x10006
            s_add_u32 s36, s36, s37
            s_bfe_u32 s37, s{10+i}, 0x10005
            s_lshl_b32 s37, s37, 1
            s_add_u32 s36, s36, s37
            s_lshl_b32 s{12+i}, s36, 13"""))
        add(L(f"""s_cmp_eq_u32 s12, s13
        s_cselect_b32 s36, 128, 0
        s_add_u32 s13, s13, s36
        v_and_b32 v8, 1, v0
        v_cmp_eq_u32 vcc, 1, v8
        v_mov_b32 v9, s12
        v_mov_b32 v6, s13
        v_cndmask_b32 v6, v9, v6, vcc
        v_add_u32 v6, v6, v5
        s_lshl_b32 s36, s{sWv}, 19
        s_add_u32 s36, s36, {WS_AR + 6144}
        s_add_u32 s37, s36, {1 << 17}
        s_add_u32 s38, s36, {2 << 17}
        s_add_u32 s39, s36, {3 << 17}"""))
        BX = 112
        bl = [f"buffer_load_dwordx4 {v(BX+4*ks,4)}, v6, {q4(sWS)}, s{36+(ks>>1)} offen offset:{64*(ks&1)} sc1" for ks in range(8)]
        add(bl + L(f"""s_lshl_b32 s5, s{sWv}, 11
        v_add_u32 v1, s5, {v(vH)}
        v_lshlrev_b32 v2, 10, v8
        v_bfe_u32 v3, v0, 1, 3
        v_lshl_add_u32 v2, v3, 6, v2
        v_add_u32 v2, v2, v5"""))
        addp(self.poll(name, bl, anysent(BX, 32, 8, 9)))
        add(ost)
        GD = 224
        add([f"{MF} {v(GD+4*m,4)}, {a(GU+(ks*2+m)*4,4)}, {v(BX+4*ks,4)}, {v(GD+4*m,4) if ks else 0}" for ks in range(8) for m in range(2)])
        add(["s_nop 6", f"ds_write_b128 v1, {v(GD,4)}", f"ds_write_b128 v1, {v(GD+4,4)} offset:1024", "s_waitcnt lgkmcnt(0)", "s_barrier"])
        add([f"ds_read_b128 {v(BX+4*i,4)}, {v(vH)} offset:{1024*i}" for i in range(8)])
        add(["s_waitcnt lgkmcnt(4)"] + [f"v_pk_add_f32 {v(BX+2*i,2)}, {v(BX+2*i,2)}, {v(BX+8+2*i,2)}" for i in range(4)])
        add(["s_waitcnt lgkmcnt(0)"] + [f"v_pk_add_f32 {v(BX+16+2*i,2)}, {v(BX+16+2*i,2)}, {v(BX+24+2*i,2)}" for i in range(4)])
        add([f"v_pk_add_f32 {v(BX+2*i,2)}, {v(BX+2*i,2)}, {v(BX+16+2*i,2)}" for i in range(4)])
        add(rndn(BX, 8, BX+8) + silu(BX, 4, BX+8) + rndn(BX, 4, BX+8) + [f"v_mul_f32 {v(BX+i)}, {v(BX+i)}, {v(BX+4+i)}" for i in range(4)] + pack(BX + 8, BX, 2))
        for i in range(8):
            m = 0x00030003 << (2 * i)
            add([f"s_mov_b32 vcc_lo, {m:#x}", f"s_mov_b32 vcc_hi, {m:#x}", f"v_cndmask_b32 {v(BX+12+2*i)}, 0, {v(BX+8)}, vcc", f"v_cndmask_b32 {v(BX+13+2*i)}, 0, {v(BX+9)}, vcc"])
        add([f"s_add_u32 s36, s{sAr}, 4096"])
        add([f"v_mfma_f32_16x16x16_bf16 {v(GD+4*h,4)}, {a(WM+2*(8*h+i),2)}, {v(BX+12+2*i,2)}, {v(GD+4*h,4) if i else 0}" for i in range(8) for h in range(2)])
        add(["s_nop 6", f"buffer_store_dwordx4 {v(GD,4)}, v2, {q4(sWS)}, s36 offen sc1", f"buffer_store_dwordx4 {v(GD+4,4)}, v2, {q4(sWS)}, s36 offen offset:512 sc1"])
        add([f"s_branch {name}_moed", f"{name}_nomoe:"] + ost + [f"{name}_moed:"] + self.stamp())
        YL = 96
        XS, HS = 208, 224
        add(L(f"""s_mov_b32 s14, 0
        v_lshlrev_b32 v6, 11, v5
        v_lshl_add_u32 v6, v15, 4, v6
        {name}_sel:
        s_lshr_b32 s36, s10, 7
        s_cmp_lg_u32 s36, s16
        s_cbranch_scc1 {name}_next
        s_mul_i32 s15, s{sWv}, {56*32768}
        s_lshr_b32 s36, s17, 2
        s_lshl_b32 s36, s36, 13
        s_add_u32 s15, s15, s36
        s_and_b32 s36, s17, 3
        s_lshl_b32 s36, s36, 8
        s_add_u32 s15, s15, s36
        s_lshl_b32 s36, s14, 10
        s_add_u32 s15, s15, s36
        s_add_u32 s15, s15, {WS_AR + 4096}"""))
        yl = ["s_mov_b32 s36, s15"]
        for i in range(14): yl += [f"buffer_load_dwordx4 {v(YL+4*i,4)}, v6, {q4(sWS)}, s36 offen sc1", "s_add_u32 s36, s36, 131072"]
        add(([] if self.o.get('pw', 0) & 16 else yl) + L(f"""s_bitcmp1_b32 s10, 4
        s_cselect_b64 vcc, -1, 0
        s_cselect_b32 s12, s21, s20
        s_and_b32 s37, s8, 0xfffff800
        s_ashr_i32 s38, s37, 31
        s_not_b32 s38, s38
        s_or_b32 s38, s38, 0x80000000
        s_xor_b32 s37, s37, s38
        v_mov_b32 v4, s37"""))
        add([f"v_cndmask_b32 {v(XS+i)}, {v(K+i)}, {v(K+16+i)}, vcc" for i in range(16)] + [f"v_cndmask_b32 {v(HS+i)}, {v(H+i)}, {v(H+16+i)}, vcc" for i in range(16)])
        add(["v_cndmask_b32 v3, v10, v11, vcc"] + rnd1(4) + L(f"""v_mul_f32 v4, {f2u(-math.log2(math.e))}, v4
        v_exp_f32 v4, v4
        s_lshl_b32 s37, s14, 10
        v_add_f32 v4, 1.0, v4
        v_rcp_f32 v4, v4
        s_add_u32 s37, s37, 16384""") + rnd1(4) + L(f"""
        s_lshl_b32 s38, s{sWv}, 8
        s_add_u32 s38, s38, s37
        v_lshl_add_u32 v1, v15, 4, s38
        v_lshl_add_u32 v2, v5, 1, s37"""))
        if self.o.get('pw', 0) & 16: add(["s_waitcnt vmcnt(0)"] + yl)
        addp(self.poll(name, yl, anysent(YL, 56, 8, 9)))
        add([f"v_pk_add_f32 {v(YL+2*i,2)}, {v(YL+2*i,2)}, {v(YL+28+2*i,2)}" for i in range(14)])
        add([f"v_pk_add_f32 {v(YL+2*i,2)}, {v(YL+2*i,2)}, {v(YL+16+2*i,2)}" for i in range(6)])
        add([f"v_pk_add_f32 {v(YL+2*i,2)}, {v(YL+2*i,2)}, {v(YL+8+2*i,2)}" for i in range(4)])
        add([f"v_pk_add_f32 {v(YL+2*i,2)}, {v(YL+2*i,2)}, {v(YL+4+2*i,2)}" for i in range(2)])
        add(allreduce([YL, YL+1, YL+2, YL+3], [YL+4, YL+5, YL+6, YL+7], lo=16))
        add([f"ds_write_b128 v1, {v(YL,4)}", "s_waitcnt lgkmcnt(0)", "s_barrier", "v_cmp_eq_u32 vcc, s8, v3", "s_and_b64 exec, exec, vcc", f"s_cbranch_execz {name}_nown"])
        rd = [f"ds_read_b128 {v(YL+16*w+4*k,4)}, v2 offset:{256*w+128*(k>>1)+16*(k&1)}" for w in range(4) for k in range(4)]
        add(rd[:12] + ["s_waitcnt lgkmcnt(4)"] + rd[12:] + [f"v_pk_add_f32 {v(YL+2*i,2)}, {v(YL+2*i,2)}, {v(YL+16+2*i,2)}" for i in range(8)])
        add(["s_waitcnt lgkmcnt(0)"] + [f"v_pk_add_f32 {v(YL+32+2*i,2)}, {v(YL+32+2*i,2)}, {v(YL+48+2*i,2)}" for i in range(8)])
        add([f"v_pk_add_f32 {v(YL+2*i,2)}, {v(YL+2*i,2)}, {v(YL+32+2*i,2)}" for i in range(8)] + rndn(YL, 16, YL+16))
        add([f"v_pk_mul_f32 {v(YL+2*i,2)}, {v(YL+2*i,2)}, v[4:5] op_sel_hi:[1,0]" for i in range(8)] + rndn(YL, 16, YL+16))
        add([f"v_pk_add_f32 {v(YL+2*i,2)}, {v(YL+2*i,2)}, {v(HS+2*i,2)}" for i in range(8)] + rndn(YL, 16, YL+16))
        add([f"v_pk_mul_f32 {v(YL+2*i,2)}, {v(YL+2*i,2)}, {v(GB+2*i,2)}" for i in range(8)] + rndn(YL, 16, YL+16))
        add([f"v_pk_add_f32 {v(YL+2*i,2)}, {v(YL+2*i,2)}, {v(XS+2*i,2)}" for i in range(8)] + pack(YL+16, YL, 8))
        add([f"buffer_store_dwordx4 {v(YL+16+4*sx,4)}, v13, {q4(sOUT)}, s12 offen offset:{64*sx}" for sx in range(2)])
        add(L(f"""{name}_nown:
        s_mov_b64 exec, -1
        {name}_next:
        s_mov_b32 s8, s9
        s_mov_b32 s10, s11
        s_add_u32 s14, s14, 1
        s_cmp_lt_u32 s14, 2
        s_cbranch_scc1 {name}_sel"""))
        if self.o.get('wbl'):
            add(L(f"""s_lshr_b32 s36, s86, 12
            s_and_b32 s36, s36, 31
            s_lshl_b32 s36, s36, 2
            s_add_u32 s36, s36, s{sWv}
            s_cmp_lg_u32 s36, {self.o['wbl'] * 4}
            s_cbranch_scc1 {name}_nwb
            s_waitcnt vmcnt(0)
            buffer_wbl2 sc1
            {name}_nwb:"""))
        if self.o.get('probe'):
            if self.o.get('probewb'): add(["s_waitcnt vmcnt(0)", "buffer_wbl2 sc1", "s_waitcnt vmcnt(0)"])
            add(L(f"""{name}_pb:
            s_memrealtime s[100:101]
            s_waitcnt lgkmcnt(0)
            s_sub_u32 s100, s100, s79
            s_cmp_lt_u32 s100, {self.o['probe'][1] * 100}
            s_cbranch_scc1 {name}_pb"""))
        if self.stamps:
            add(["s_waitcnt vmcnt(0)"] + self.stamp(True) + [f"s_add_u32 s68, s68, {WS_TIME}", "s_addc_u32 s69, s69, 0", "s_lshl_b32 s36, s2, 2", f"s_add_u32 s36, s36, s{sWv}",
                 "s_lshl_b32 s36, s36, 7", "v_lshl_add_u32 v13, v0, 2, s36", "s_mov_b32 exec_hi, 0", "global_store_dword v13, v255, s[68:69]"])
        add([f"{name}_end:", "s_endpgm"])
        return t, tr
    def slow(self, name):
        NG = PB + 16; MX = vL
        o = [f"{name}_slow:", "s_waitcnt vmcnt(0) lgkmcnt(0)"] + self.stg_reads(1) + L(f"""s_mov_b32 s6, 1
        v_and_b32 v13, 15, v0
        v_lshlrev_b32 v1, 8, v13
        v_add_u32 v1, v1, v5
        v_add_u32 v1, {BIAS}, v1
        v_add_u32 v3, 4096, v1
        v_lshlrev_b32 v2, 7, v5
        v_lshl_add_u32 v2, v13, 4, v2
        v_add_u32 v2, {BIAS + 3*8192}, v2
        v_bfe_u32 v13, v0, 2, 3
        v_mul_u32_u24 v4, 1056, v13
        v_lshrrev_b32 v13, 5, v0
        v_lshl_add_u32 v4, v13, 8, v4
        v_and_b32 v13, 3, v0
        v_lshl_add_u32 v4, v13, 3, v4
        v_add_u32 v4, s5, v4
        s_mov_b32 s{sOffKV}, 0
        s_waitcnt lgkmcnt(0)""") + [f"v_mov_b32 {v(MX+i)}, 0xff800000" for i in range(4)]
        kl = [f"buffer_load_dwordx4 {a(KF+(t*4+ks)*4,4)}, {v(1+2*t)}, {q4(sK)}, s{sOffKV} offen offset:{64*ks}" for t in range(2) for ks in range(4)]
        p1 = [f"{name}_s1:"] + kl + ["s_waitcnt vmcnt(0)"] + self.qk(0) + ["s_nop 7"]
        for qb in range(4):
            p1 += [f"v_max3_f32 {v(MX+qb)}, {v(MX+qb)}, {v(SB+8*qb+2*i)}, {v(SB+8*qb+2*i+1)}" for i in range(4)]
        p1 += [f"s_add_u32 s{sOffKV}, s{sOffKV}, 8192", f"s_cmp_lt_u32 s{sOffKV}, 524288", f"s_cbranch_scc1 {name}_s1"]
        m = allreduce([MX, MX+1, MX+2, MX+3], [NG, NG+1, NG+2, NG+3], op="v_max_f32", lo=16)
        m += [f"v_sub_f32 {v(NG+4*qb+i)}, 0, {v(MX+qb)}" for qb in range(4) for i in range(4)]
        m += [f"v_mov_b64 {v(OB+2*i,2)}, 0" for i in range(64)] + [f"v_accvgpr_write_b32 {a(LB+i)}, 0" for i in range(16)] + [f"s_mov_b32 s{sOffKV}, 0"]
        p2 = [f"{name}_s2:"] + kl + [f"s_mov_b32 s36, s{sOffKV}"]
        for p in range(8): p2 += [f"s_add_u32 m0, s5, {1056*p}", "s_nop 0", f"buffer_load_dwordx4 v2, {q4(sV)}, s36 offen lds", "s_add_u32 s36, s36, 256"]
        vr = [f"ds_read_b64_tr_b16 {a(VF+db*4+2*tt,2)}, v4 offset:{512*tt+32*db}" for db in range(8) for tt in range(2)]
        p2 += ["s_waitcnt vmcnt(0)"] + vr[:8] + self.qk(0, KF, NG) + vr[8:] + self.exps(0) + ["s_nop 0"] + self.cvts(0) + ["s_waitcnt lgkmcnt(0)", "s_nop 0"] + self.pv(0)
        p2 += [f"s_add_u32 s{sOffKV}, s{sOffKV}, 8192", f"s_cmp_lt_u32 s{sOffKV}, 524288", f"s_cbranch_scc1 {name}_s2"]
        e = [f"v_accvgpr_read_b32 {v(vL+qb)}, {a(LB+4*qb)}" for qb in range(4)] + [f"v_rcp_f32 {v(vL+qb)}, {v(vL+qb)}" for qb in range(4)] + ["s_nop 7", f"s_branch {name}_ret"]
        return o + p1 + m + p2 + e, o + p1 + p1 + m + p2 + p2 + e
    def build(self, name):
        parts = [self.front(name), self.attention(name), self.transition(name), self.oproj(name), self.tail(name)]
        sl = self.slow(name)
        text = sum((p[0] for p in parts), []) + self.ool + sl[0]
        trace = sum((p[1] for p in parts), [])
        return text, [trace, sl[1]], dict(grid=256, block=256, lds=163840, vgpr=512, accum=256)
```

```python
from layout import *
import struct, math
def f2u(x): return struct.unpack('<I', struct.pack('<f', x))[0]
def v(b, n=1): return f"v{b}" if n == 1 else f"v[{b}:{b+n-1}]"
def a(b, n=1): return f"a{b}" if n == 1 else f"a[{b}:{b+n-1}]"
def s(b, n=1): return f"s{b}" if n == 1 else f"s[{b}:{b+n-1}]"
def L(t): return [l.strip() for l in t.split("\n") if l.strip()]
NT = ''
DPP = "row_mask:0xf bank_mask:0xf"
LOG2E = f2u(math.log2(math.e))
def srd(d, base, off, size):
    if off == 0: o = [f"s_mov_b32 s{d}, s{base}", f"s_mov_b32 s{d+1}, s{base+1}"] if d != base else []
    else: o = [f"s_add_u32 s{d}, s{base}, {off}", f"s_addc_u32 s{d+1}, s{base+1}, 0"]
    return o + [f"s_mov_b32 s{d+2}, {size}", f"s_mov_b32 s{d+3}, 0x20000"]
def unpack(dst, src, n):
    o = []
    for i in range(n):
        o += [f"v_lshlrev_b32 {v(dst+2*i)}, 16, {v(src+i)}", f"v_and_b32 {v(dst+2*i+1)}, 0xffff0000, {v(src+i)}"]
    return o
def pack(dst, src, n): return [f"v_cvt_pk_bf16_f32 {v(dst+i)}, {v(src+2*i)}, {v(src+2*i+1)}" for i in range(n)]
def rnd2(r0, r1, t):
    return [f"v_cvt_pk_bf16_f32 {v(t)}, {v(r0)}, {v(r1)}", f"v_lshlrev_b32 {v(r0)}, 16, {v(t)}", f"v_and_b32 {v(r1)}, 0xffff0000, {v(t)}"]
def rnd1(r): return [f"v_cvt_pk_bf16_f32 {v(r)}, {v(r)}, {v(r)}", f"v_lshlrev_b32 {v(r)}, 16, {v(r)}"]
def rndn(r, n, t):
    o = pack(t, r, n // 2); return o + unpack(r, t, n // 2)
def allreduce(regs, tmps, op="v_add_f32", lo=1):
    o = []; pad = ["s_nop 1"] if len(regs) == 1 else (["s_nop 0"] if len(regs) == 2 else [])
    for sh in (8, 4, 2, 1):
        if sh < lo: continue
        o += pad if o else ["s_nop 1"]
        o += [f"{op}_dpp {v(r)}, {v(r)}, {v(r)} row_ror:{sh} {DPP}" for r in regs]
    for pl in ("v_permlane16_swap_b32", "v_permlane32_swap_b32"):
        o += [f"v_mov_b32 {v(t)}, {v(r)}" for r, t in zip(regs, tmps)] + (["s_nop 1"] if len(regs) < 2 else ["s_nop 0"] if len(regs) < 3 else [])
        o += [f"{pl} {v(r)}, {v(t)}" for r, t in zip(regs, tmps)]
        o += [f"{op} {v(r)}, {v(r)}, {v(t)}" for r, t in zip(regs, tmps)]
    return o
class Stamp:
    def __init__(self, on, kid): self.on = on; self.kid = kid
    def rd(self, r, c): return [f"s_memrealtime s[98:99]", "s_memtime s[100:101]", "s_waitcnt lgkmcnt(0)", f"s_mov_b32 s{r}, s98", f"s_mov_b32 s{c}, s100"]
    def start(self): return self.rd(96, 97) if self.on else []
    def mid(self, i): return self.rd(84 + 2*i, 85 + 2*i) if self.on else []
    def end(self):
        if not self.on: return []
        o = L(f"""s_waitcnt vmcnt(0) lgkmcnt(0)
        s_memrealtime s[98:99]
        s_memtime s[100:101]
        s_load_dwordx2 s[94:95], s[0:1], {KA_WS}
        s_waitcnt lgkmcnt(0)
        s_add_u32 s94, s94, {WS_TIME + 65536 * (1 + self.kid)}
        s_addc_u32 s95, s95, 0
        s_mov_b64 exec, 1
        s_lshl_b32 s93, s2, 6
        v_mov_b32 v1, s93
        s_getreg_b32 s93, hwreg(HW_REG_XCC_ID)""")
        for k, r in ((0, 96), (1, 98), (2, 93), (4, 84), (5, 86), (6, 88), (8, 97), (9, 100), (12, 85), (13, 87), (14, 89)):
            o += [f"v_mov_b32 v2, s{r}", f"global_store_dword v1, v2, s[94:95] offset:{4*k}"]
        return o

def ln_scalars(sm, sq, t):
    return L(f"""v_mul_f32 {v(sm)}, {f2u(1/1024)}, {v(sm)}
    v_mul_f32 {v(sq)}, {f2u(1/1024)}, {v(sq)}
    v_fma_f32 {v(sq)}, -{v(sm)}, {v(sm)}, {v(sq)}
    v_max_f32 {v(sq)}, 0, {v(sq)}""") + rnd2(sm, sq, t) + [f"v_add_f32 {v(sq)}, {f2u(1e-5)}, {v(sq)}"] + rnd1(sq) + \
      [f"v_sqrt_f32 {v(sq)}, {v(sq)}", "s_nop 0"] + rnd1(sq) + [f"v_rcp_f32 {v(sq)}, {v(sq)}", "s_nop 0"]
def sums(x, n, sm, sq):
    o = [f"v_add_f32 {v(sm)}, {v(x)}, {v(x+1)}", f"v_mul_f32 {v(sq)}, {v(x)}, {v(x)}", f"v_fmac_f32 {v(sq)}, {v(x+1)}, {v(x+1)}"]
    for i in range(2, n): o += [f"v_add_f32 {v(sm)}, {v(sm)}, {v(x+i)}", f"v_fmac_f32 {v(sq)}, {v(x+i)}, {v(x+i)}"]
    return o


def silu(x, n, t):
    o = [f"v_mul_f32 {v(t+i)}, {f2u(-math.log2(math.e))}, {v(x+i)}" for i in range(n)]
    o += [f"v_exp_f32 {v(t+i)}, {v(t+i)}" for i in range(n)] + (["s_nop 0"] if n == 1 else [])
    o += [f"v_add_f32 {v(t+i)}, 1.0, {v(t+i)}" for i in range(n)]
    o += [f"v_rcp_f32 {v(t+i)}, {v(t+i)}" for i in range(n)] + (["s_nop 0"] if n == 1 else [])
    return o + [f"v_mul_f32 {v(x+i)}, {v(x+i)}, {v(t+i)}" for i in range(n)]
def red8(acc):
    o = ["s_nop 1"] + [f"v_permlane32_swap_b32 {v(acc+e)}, {v(acc+4+e)}" for e in range(4)] + [f"v_add_f32 {v(acc+e)}, {v(acc+e)}, {v(acc+4+e)}" for e in range(4)]
    o += ["s_nop 1"] + [f"v_permlane16_swap_b32 {v(acc+e)}, {v(acc+2+e)}" for e in range(2)] + [f"v_add_f32 {v(acc+e)}, {v(acc+e)}, {v(acc+2+e)}" for e in range(2)]
    o += ["s_nop 1"] + [f"v_add_f32_dpp {v(acc+e)}, {v(acc+e)}, {v(acc+e)} row_ror:8 {DPP}" for e in range(2)]
    return o
def code_touch(label, nlines, vaddr, vdst, lane, sp=90):
    return L(f"""s_getpc_b64 s[{sp}:{sp+1}]
    s_add_u32 s{sp}, s{sp}, {label}-.
    s_addc_u32 s{sp+1}, s{sp+1}, 0
    v_min_u32 {v(vaddr)}, {nlines}-1, {v(lane)}
    v_lshlrev_b32 {v(vaddr)}, 7, {v(vaddr)}
    global_load_dword {v(vdst)}, {v(vaddr)}, s[{sp}:{sp+1}]""")

def k_mod(name, st, opt):
    o = L(f"""s_cmp_ge_u32 s2, 256
    s_cbranch_scc1 {name}_end""") + st.start() + (["s_memrealtime s[60:61]"] if opt.get('probe0') else []) + L(f"""
    s_load_dwordx4 s[4:7], s[0:1], {KA_C}
    s_load_dwordx2 s[16:17], s[0:1], {KA_WS}
    s_load_dwordx2 s[24:25], s[0:1], {KA_X}
    s_load_dwordx2 s[32:33], s[0:1], {KA_WQ}
    s_cmp_ge_u32 s2, 128
    s_cbranch_scc1 {name}_aux
    s_and_b32 s3, s2, 31
    s_lshr_b32 s20, s2, 5
    v_lshrrev_b32 v1, 3, v0
    v_and_b32 v2, 7, v0
    v_mul_u32_u24 v3, {4*12288}, v1
    v_lshl_add_u32 v3, v2, 4, v3
    s_mul_i32 s21, s20, {256*12288}
    s_lshl_b32 s22, s3, 7
    s_add_u32 s21, s21, s22
    v_lshlrev_b32 v1, 3, v1
    s_lshl_b32 s22, s20, 9
    s_waitcnt lgkmcnt(0)""")
    o += srd(12, 6, 0, 1024 * 12288) + srd(8, 4, 0, 2048)
    for i in range(4):
        o += [f"buffer_load_dwordx4 {v(32+4*i,4)}, v3, s[12:15], s21 offen nt", "s_add_u32 s21, s21, 12288"]
        if i == 0: o += ["buffer_load_dwordx2 v[4:5], v1, s[8:11], s22 offen"]
    o += srd(16, 16, WS_MP1, 32768 + 2048)
    o += L(f"""v_lshrrev_b32 v6, 6, v0
    v_lshlrev_b32 v6, 8, v6
    v_lshl_add_u32 v6, v2, 5, v6
    v_bfe_u32 v7, v0, 4, 2
    v_lshl_add_u32 v6, v7, 3, v6
    v_lshlrev_b32 v7, 2, v0
    s_lshl_b32 s21, s20, 13
    s_lshl_b32 s23, s3, 8
    s_add_u32 s21, s21, s23
    s_add_u32 s22, s22, 32768
    s_waitcnt vmcnt(3)""") + st.mid(0) + unpack(8, 4, 2) + silu(8, 4, 16) + rndn(8, 4, 4)
    for i in range(4):
        o += ([f"s_waitcnt vmcnt({3-i})"] if i else []) + unpack(24, 32 + 4*i, 4)
        o += [(f"v_fmac_f32 {v(16+e)}, {v(8+i)}, {v(24+e)}" if i else f"v_mul_f32 {v(16+e)}, {v(8+i)}, {v(24+e)}") for e in range(8)]
    o += st.mid(1) + red8(16) + L(f"""ds_write_b64 v6, v[16:17]
    s_cmp_lg_u32 s3, 0
    s_cbranch_scc1 {name}_nos
    buffer_store_dwordx2 v[4:5], v1, s[16:19], s22 offen
    {name}_nos:
    s_waitcnt lgkmcnt(0)
    s_barrier
    v_cmp_gt_u32 vcc, 64, v0
    s_and_saveexec_b64 s[26:27], vcc
    s_cbranch_execz {name}_fin""")
    o += [f"ds_read_b32 {v(8+i)}, v7 offset:{256*i}" for i in range(8)] + ["s_waitcnt lgkmcnt(0)"]
    o += [f"v_add_f32 {v(8+i)}, {v(8+i)}, {v(12+i)}" for i in range(4)] + ["v_add_f32 v8, v8, v9", "v_add_f32 v10, v10, v11", "v_add_f32 v8, v8, v10"]
    o += L(f"""buffer_store_dword v8, v7, s[16:19], s21 offen
    s_branch {name}_fin
    {name}_aux:
    v_lshlrev_b32 v1, 7, v0
    s_sub_u32 s3, s2, 128
    s_lshr_b32 s20, s3, 4
    s_lshl_b32 s20, s20, 19
    s_and_b32 s21, s3, 7
    s_lshl_b32 s21, s21, 16
    s_add_u32 s20, s20, s21
    s_bfe_u32 s21, s3, 0x10003
    s_lshl_b32 s21, s21, 15
    s_add_u32 s20, s20, s21
    v_lshlrev_b32 v3, 4, v0
    v_mov_b64 v[6:7], 0
    v_mov_b64 v[8:9], 0
    v_mov_b32 v10, -1
    v_mov_b32 v11, -1
    v_mov_b32 v12, -1
    v_mov_b32 v13, -1
    s_lshl_b32 s21, s3, 13
    s_waitcnt lgkmcnt(0)""") + srd(24, 24, 0, 4 << 20) + srd(12, 16, WS_SENT, SENT_BYTES) + srd(16, 16, WS_FL, 131072)
    o += L(f"""s_sub_u32 s22, {127*8192}, s21
    buffer_store_dwordx4 v[6:9], v3, s[16:19], s22 offen
    buffer_store_dwordx4 v[10:13], v3, s[12:15], s21 offen
    v_cmp_gt_u32 vcc, 256, v0
    s_and_saveexec_b64 s[26:27], vcc
    s_cbranch_execz {name}_aux2
    buffer_load_dword v5, v1, s[24:27], s20 offen {opt.get('xt','')}
    s_branch {name}_fin
    {name}_aux2:
    s_mov_b64 exec, s[26:27]
    s_lshr_b32 s20, s3, 3
    v_cmp_gt_u32 vcc, 384, v0
    s_and_saveexec_b64 s[26:27], vcc
    s_cbranch_execz {name}_aux3""") + srd(32, 32, 0, 8 << 20) + L(f"""
    v_bfe_u32 v1, v0, 3, 4
    v_lshlrev_b32 v1, 13, v1
    v_and_b32 v2, 7, v0
    v_lshl_add_u32 v1, v2, 7, v1
    s_lshl_b32 s21, s20, 17
    s_and_b32 s22, s3, 7
    s_lshl_b32 s22, s22, 10
    s_add_u32 s21, s21, s22""")
    for i in range(opt.get('k0w', 1)): o += ["buffer_load_dword v5, v1, s[32:35], s21 offen nt", f"s_add_u32 s21, s21, {256*8192}"]
    o += L(f"""s_branch {name}_fin
    {name}_aux3:
    s_mov_b64 exec, s[26:27]
    v_and_b32 v1, 31, v0
    v_lshl_add_u32 v1, s20, 5, v1""")
    o = [l.replace("s[26:27]", "s[28:29]") if "exec" in l else l for l in o]
    if opt.get('ct', 1): o += code_touch("attn_kernel", "((attn_slow-attn_kernel)>>7)", 2, 5, 1)
    o += [f"{name}_fin:"] + st.end()
    if opt.get('probe0') == -1:
        o += L(f"""s_cmp_lg_u32 s2, 0
        s_cbranch_scc1 {name}_end
        s_load_dwordx2 s[62:63], s[0:1], {KA_WS}
        s_mov_b64 exec, 1
        v_mov_b32 v1, {WS_SILU + 4096}
        s_waitcnt lgkmcnt(0)
        v_mov_b32 v2, s60
        global_store_dword v1, v2, s[62:63]""")
    elif opt.get('probe0'):
        o += L(f"""{name}_pb:
        s_memrealtime s[62:63]
        s_waitcnt lgkmcnt(0)
        s_sub_u32 s62, s62, s60
        s_cmp_lt_u32 s62, {opt['probe0'] * 100}
        s_cbranch_scc1 {name}_pb""")
    o += [f"{name}_end:", "s_endpgm"]
    return o, dict(grid=256, block=512, lds=2048, vgpr=64)

def rowhead(name, st, loads, n=256):
    return L(f"""s_cmp_ge_u32 s2, {n}
    s_cbranch_scc1 {name}_end""") + st.start() + L(loads) + L(f"""
    v_lshrrev_b32 v1, 6, v0
    v_mov_b32 v3, v0
    v_readfirstlane_b32 s33, v1
    v_and_b32 v0, 63, v0
    s_lshl_b32 s30, s2, 3
    v_lshlrev_b32 v1, 4, v0
    s_add_u32 s3, s33, s30
    s_lshl_b32 s30, s3, 11
    s_waitcnt lgkmcnt(0)""")

def k_h(name, st, opt):
    o = rowhead(name, st, f"s_load_dwordx8 s[36:43], s[0:1], {KA_X}\ns_load_dwordx2 s[4:5], s[0:1], {KA_WS}")
    o += srd(12, 4, WS_MP1, 32768) + srd(8, 36, 0, 4 << 20)
    X, SA, A = 32, 48, 64
    o += ["v_lshlrev_b32 v2, 4, v3", "v_mov_b32 v81, v3"]
    for p in range(4): o += [f"s_mov_b32 s31, {8192*p}", f"buffer_load_dwordx4 {v(12+4*p,4)}, v2, s[12:15], s31 offen"]
    o += L(f"""buffer_load_dwordx4 v[4:7], v1, s[8:11], s30 offen
    buffer_load_dwordx4 v[8:11], v1, s[8:11], s30 offen offset:1024""")
    npf = 0
    o += srd(16, 4, WS_H, 4 << 20) + L(f"""
    s_lshr_b32 s20, s3, 4
    s_lshl_b32 s20, s20, 10
    s_and_b32 s21, s3, 15
    s_lshl_b32 s21, s21, 4
    s_add_u32 s20, s20, s21
    s_add_u32 s21, s20, {16 << 17}
    s_cmp_ge_u32 s33, 4
    s_cselect_b32 s35, 1.0, 0
    s_waitcnt vmcnt({2+npf})""") + st.mid(0)
    o += [f"v_add_f32 {v(12+e)}, {v(12+e)}, {v(16+e)}" for e in range(4)] + [f"v_add_f32 {v(20+e)}, {v(20+e)}, {v(24+e)}" for e in range(4)]
    o += [f"v_add_f32 {v(12+e)}, {v(12+e)}, {v(20+e)}" for e in range(4)] + rndn(12, 4, 16)
    o += [f"v_add_f32 {v(12+e)}, s35, {v(12+e)}" for e in range(4)] + rndn(12, 4, 16)
    o += L(f"""ds_write_b128 v2, v[12:15]
    v_lshrrev_b32 v2, 2, v0
    v_lshlrev_b32 v2, 17, v2
    v_and_b32 v3, 3, v0
    v_lshl_add_u32 v2, v3, 8, v2
    v_lshlrev_b32 v3, 5, v0
    s_waitcnt vmcnt({npf}) lgkmcnt(0)
    s_barrier""") + st.mid(1)
    if opt.get('pfw', 1):
        o += srd(24, 42, 0, 8 << 20) + L(f"""
        s_cmp_ge_u32 s33, 4
        s_cbranch_scc1 {name}_pf2
        v_lshrrev_b32 v28, 3, v81
        v_lshlrev_b32 v28, 13, v28
        v_and_b32 v29, 7, v81
        v_lshl_add_u32 v28, v29, 7, v28
        s_lshr_b32 s31, s2, 3
        s_lshl_b32 s31, s31, 18
        s_and_b32 s34, s2, 7
        s_lshl_b32 s34, s34, 10
        s_add_u32 s31, s31, s34
        buffer_load_dword v80, v28, s[24:27], s31 offen nt
        s_branch {name}_pf3
        {name}_pf2:
        v_and_b32 v29, 255, v81""") + code_touch("attn_kernel", "((attn_o-attn_kernel)>>7)", 28, 80, 29) + [f"{name}_pf3:"]
    for i in range(4): o += [f"ds_read_b128 {v(SA+4*i,4)}, v3 offset:{16*(i&1) + 2048*(i>>1)}"]
    for i in range(4): o += [f"ds_read_b128 {v(A+4*i,4)}, v3 offset:{4096 + 16*(i&1) + 2048*(i>>1)}"]
    o += unpack(X, 4, 8) + sums(X, 16, 28, 29) + allreduce([28, 29], [30, 31]) + ln_scalars(28, 29, 30)
    o += [f"v_sub_f32 {v(X+i)}, {v(X+i)}, v28" for i in range(16)]
    o += [f"v_mul_f32 {v(X+i)}, {v(X+i)}, v29" for i in range(16)]
    o += ["s_waitcnt lgkmcnt(0)"]
    o += [f"v_fma_f32 {v(X+i)}, {v(X+i)}, {v(A+i)}, {v(SA+i)}" for i in range(16)] + pack(4, X, 8)
    o += [f"buffer_store_dwordx4 v[4:7], v2, s[16:19], s20 offen {opt.get('sth','')}", f"buffer_store_dwordx4 v[8:11], v2, s[16:19], s21 offen {opt.get('sth','')}"] + st.mid(2)
    o += st.end() + [f"{name}_end:", "s_endpgm"]
    return o, dict(grid=256, block=512, lds=8192, vgpr=84)

def ln_scalars_n(sm, sq, n, t, rcp=True):
    R = range(n)
    o = [f"v_mul_f32 {v(sm+i)}, {f2u(1/1024)}, {v(sm+i)}" for i in R] + [f"v_mul_f32 {v(sq+i)}, {f2u(1/1024)}, {v(sq+i)}" for i in R]
    o += [f"v_fma_f32 {v(sq+i)}, -{v(sm+i)}, {v(sm+i)}, {v(sq+i)}" for i in R] + [f"v_max_f32 {v(sq+i)}, 0, {v(sq+i)}" for i in R]
    o += rndn(sm, n, t) + rndn(sq, n, t) + [f"v_add_f32 {v(sq+i)}, {f2u(1e-5)}, {v(sq+i)}" for i in R] + rndn(sq, n, t)
    o += [f"v_sqrt_f32 {v(sq+i)}, {v(sq+i)}" for i in R] + ["s_nop 0"]
    if not rcp: return o
    o += rndn(sq, n, t) + [f"v_rcp_f32 {v(sq+i)}, {v(sq+i)}" for i in R] + ["s_nop 0"]
    return o

def k_moe(name, st, opt):
    LM, LK, LX, LR = 98304, 114688, 115712, 120832
    nt = opt.get('ntm', '')
    o = rowhead(name, st, f"""s_load_dwordx4 s[4:7], s[0:1], {KA_WG}
    s_load_dwordx2 s[16:17], s[0:1], {KA_WD}
    s_load_dwordx2 s[28:29], s[0:1], {KA_WS}
    s_load_dwordx2 s[44:45], s[0:1], {KA_OUT}""")
    o += srd(20, 28, WS_STAT, 25600) + ["v_lshlrev_b32 v2, 4, v3", "s_mov_b32 s31, 8192", "s_mov_b32 s34, 16384",
         "buffer_load_dwordx4 v[8:11], v2, s[20:23], 0 offen", "buffer_load_dwordx4 v[12:15], v2, s[20:23], s31 offen", "buffer_load_dwordx4 v[16:19], v2, s[20:23], s34 offen",
         f"s_load_dwordx2 s[52:53], s[20:21], 24576"]
    o += srd(24, 28, WS_X2, 4 << 20) + srd(40, 28, WS_MODF + 2048, 6144 + 64)
    o += L("""buffer_load_dwordx4 v[20:23], v1, s[24:27], s30 offen
    buffer_load_dwordx4 v[24:27], v1, s[24:27], s30 offen offset:1024
    s_mov_b32 s31, 4096
    buffer_load_dwordx4 v[28:31], v1, s[40:43], 0 offen
    buffer_load_dwordx4 v[32:35], v1, s[40:43], 0 offen offset:1024
    buffer_load_dwordx4 v[36:39], v1, s[40:43], 0 offen offset:2048
    buffer_load_dwordx4 v[40:43], v1, s[40:43], 0 offen offset:3072
    buffer_load_dwordx4 v[44:47], v1, s[40:43], s31 offen
    buffer_load_dwordx4 v[48:51], v1, s[40:43], s31 offen offset:1024
    v_and_b32 v4, 31, v0
    v_lshlrev_b32 v4, 3, v4
    s_lshl_b32 s36, s33, 8
    buffer_load_dwordx2 v[52:53], v4, s[40:43], s36 offen
    buffer_load_dwordx2 v[54:55], v4, s[40:43], s36 offen offset:2048""")
    o += srd(8, 4, 0, 1024 * 7168) + srd(12, 6, 0, 1024 * 7168) + srd(16, 16, 0, 3584 * 2048) + srd(44, 44, 0, 4 << 20) + srd(48, 28, WS_YP, 224 * 8192)
    o += L(f"""s_and_b32 s37, s2, 7
    s_mul_i32 s37, s37, 28
    s_lshr_b32 s34, s2, 3
    s_add_u32 s37, s37, s34
    s_cmp_ge_u32 s2, 224
    s_cselect_b32 s37, 0x4000, s37
    v_bfe_u32 v5, v0, 3, 2
    v_lshlrev_b32 v5, 3, v5
    v_lshrrev_b32 v6, 5, v0
    v_lshl_add_u32 v5, v6, 2, v5
    v_bfe_u32 v7, v0, 1, 2
    v_add_u32 v5, v5, v7
    v_mul_u32_u24 v5, 7168, v5
    v_and_b32 v7, 1, v0
    v_lshl_add_u32 v5, v7, 4, v5
    v_bfe_u32 v56, v0, 1, 4
    v_lshlrev_b32 v56, 11, v56
    v_lshl_add_u32 v56, v6, 5, v56
    v_lshl_add_u32 v56, v7, 4, v56
    s_mul_i32 s34, s33, {128*7168}
    s_lshl_b32 s35, s37, 5
    s_add_u32 s34, s34, s35
    s_cmp_ge_u32 s2, 224
    s_cselect_b32 s34, 0x10000000, s34
    s_lshl_b32 s35, s37, 15
    s_add_u32 s35, s35, s36
    s_mul_i32 s38, s33, 12288""")
    for ks in range(4):
        for m in range(2):
            o += [f"s_add_u32 m0, s38, {(ks*2+m)*1024}", "s_nop 0", f"buffer_load_dwordx4 v5, {s(8+4*m,4)}, s34 offen lds {nt}"]
        o += [f"s_add_u32 s34, s34, {32*7168}"]
    for i in range(4):
        o += [f"s_add_u32 m0, s38, {8192+i*1024}", "s_nop 0", f"buffer_load_dwordx4 v56, s[16:19], s35 offen lds {nt}", "s_add_u32 s35, s35, 64"]
    o += ["s_waitcnt vmcnt(22) lgkmcnt(0)"] + st.mid(0) + ln_scalars_n(8, 12, 4, 60)
    o += [f"v_add_u32 v57, {LM}, v2", "ds_write_b128 v57, v[8:11]", "ds_write_b128 v57, v[12:15] offset:8192"]
    o += [f"v_fma_f32 {v(16+i)}, -{v(8+i)}, s52, {v(16+i)}" for i in range(4)] + [f"v_fma_f32 {v(16+i)}, {v(16+i)}, {v(12+i)}, s53" for i in range(4)]
    o += ["v_lshlrev_b32 v58, 2, v3", "v_sub_u32 v58, 2047, v58"]
    for i in range(4):
        o += [f"v_ashrrev_i32 v59, 31, {v(16+i)}", "v_or_b32 v59, 0x80000000, v59", f"v_xor_b32 {v(16+i)}, {v(16+i)}, v59", f"v_and_b32 {v(16+i)}, 0xfffff800, {v(16+i)}",
              f"v_subrev_u32 v59, {i}, v58", f"v_or_b32 {v(16+i)}, {v(16+i)}, v59"]
    o += ["v_max_u32 v60, v16, v17", "v_min_u32 v61, v16, v17"]
    for i in (2, 3): o += [f"v_med3_u32 v61, v60, v61, {v(16+i)}", f"v_max_u32 v60, v60, {v(16+i)}"]
    mrg = ["v_max_u32 v61, v61, v63", "v_med3_u32 v61, v60, v62, v61", "v_max_u32 v60, v60, v62"]
    def dppm(shs):
        r = []
        for sh in shs: r += ["s_nop 1", f"v_mov_b32_dpp v62, v60 row_ror:{sh} {DPP}", f"v_mov_b32_dpp v63, v61 row_ror:{sh} {DPP}"] + mrg
        return r
    o += dppm((8, 4, 2, 1))
    o += L(f"""v_lshrrev_b32 v58, 4, v3
    v_lshlrev_b32 v58, 3, v58
    v_add_u32 v58, {LK}, v58
    ds_write_b64 v58, v[60:61]
    v_and_b32 v58, 15, v0
    v_lshlrev_b32 v58, 4, v58
    v_add_u32 v58, {LK}, v58
    s_waitcnt lgkmcnt(0)
    s_barrier
    ds_read_b128 v[60:63], v58
    s_lshl_b32 s31, s3, 2
    s_add_u32 s31, s31, {LM}
    v_mov_b32 v57, s31
    ds_read2st64_b32 v[64:65], v57 offset0:0 offset1:32
    s_waitcnt lgkmcnt(1)""") + mrg + dppm((8, 4, 2, 1))
    o += L(f"""v_cmp_lt_u32 vcc, 31, v0
    s_nop 1
    v_cndmask_b32 v62, v60, v61, vcc
    v_and_b32 v63, 2047, v62
    v_sub_u32 v63, 2047, v63
    v_lshl_add_u32 v58, v63, 11, v4
    buffer_load_dwordx2 v[66:67], v58, s[24:27], s36 offen
    v_lshlrev_b32 v63, 2, v63
    v_add_u32 v63, {LM}, v63
    ds_read2st64_b32 v[68:69], v63 offset0:0 offset1:32
    s_waitcnt vmcnt(15) lgkmcnt(1)""")
    o += st.mid(1)
    X, T, B = 72, 88, 104
    o += unpack(X, 20, 8) + unpack(T, 36, 8) + unpack(B, 28, 8)
    H = 20
    o += [f"v_sub_f32 {v(H+i)}, {v(X+i)}, v64" for i in range(16)] + [f"v_mul_f32 {v(H+i)}, {v(H+i)}, v65" for i in range(16)]
    o += [f"v_fma_f32 {v(H+i)}, {v(H+i)}, {v(T+i)}, {v(B+i)}" for i in range(16)] + rndn(H, 16, 36) + unpack(T, 44, 8)
    o += [f"v_mul_f32 {v(H+i)}, {v(H+i)}, {v(T+i)}" for i in range(16)] + rndn(H, 16, 36)
    o += [f"v_add_f32 {v(H+i)}, {v(H+i)}, {v(X+i)}" for i in range(16)] + pack(36, H, 8)
    so = opt.get('stout', 'sc1')
    o += [f"buffer_store_dwordx4 v[36:39], v1, s[44:47], s30 offen {so}", f"buffer_store_dwordx4 v[40:43], v1, s[44:47], s30 offen offset:1024 {so}"]
    o += L(f"""s_cmp_ge_u32 s2, 224
    s_cbranch_scc1 {name}_fin
    v_lshlrev_b32 v6, 3, v0
    v_add_u32 v5, s38, v6
    s_lshl_b32 s31, s33, 9
    s_add_u32 s31, s31, {LX}
    v_add_u32 v6, s31, v6
    v_lshrrev_b32 v12, 4, v0
    v_lshlrev_b32 v13, 8, v7
    v_lshl_add_u32 v13, v12, 4, v13
    v_add_u32 v13, s31, v13
    s_waitcnt vmcnt(2) lgkmcnt(0)""") + st.mid(2)
    for i in range(12): o += [f"ds_read_b64_tr_b16 {a(2*i,2)}, v5 offset:{512*i}"]
    o += unpack(8, 66, 2) + unpack(16, 52, 2) + unpack(20, 54, 2)
    o += [f"v_sub_f32 {v(8+i)}, {v(8+i)}, v68" for i in range(4)] + [f"v_mul_f32 {v(8+i)}, {v(8+i)}, v69" for i in range(4)]
    o += [f"v_fma_f32 {v(8+i)}, {v(8+i)}, {v(20+i)}, {v(16+i)}" for i in range(4)] + pack(14, 8, 2)
    o += ["s_waitcnt lgkmcnt(4)", "ds_write_b64 v6, v[14:15]"]
    for i in range(12, 16): o += [f"ds_read_b64_tr_b16 {a(2*i,2)}, v5 offset:{512*i}"]
    o += [f"ds_read_b128 {v(16+4*ks,4)}, v13 offset:{64*ks}" for ks in range(4)]
    o += L(f"""s_or_b32 s39, s2, s33
    s_cmp_lg_u32 s39, 0
    s_cbranch_scc1 {name}_nosel
    v_lshrrev_b32 v8, 5, v0
    v_lshlrev_b32 v8, 4, v8
    v_mov_b32 v67, v62
    s_mov_b32 s39, 6144
    buffer_store_dwordx3 v[67:69], v8, s[40:43], s39 offen
    {name}_nosel:
    s_lshl_b32 s39, s33, 11
    s_add_u32 s39, s39, {LR}
    v_add_u32 v9, s39, v1
    v_add_u32 v10, {LR}, v1
    s_waitcnt lgkmcnt(0)""").copy()
    o = [l.replace("v[67:69]", "v[66:68]") for l in o]
    i0 = o.index("v_mov_b32 v67, v62"); o[i0:i0+1] = ["v_mov_b32 v66, v62", "v_mov_b32 v67, v68", "v_mov_b32 v68, v69"]
    for i in range(8): o += [f"ds_read_b64_tr_b16 {a(32+2*i,2)}, v5 offset:{8192+512*i}"]
    for ks in range(4):
        for m in range(2):
            o += [f"v_mfma_f32_16x16x32_bf16 {v(32+4*m,4)}, {a((ks*2+m)*4,4)}, {v(16+4*ks,4)}, {v(32+4*m,4) if ks else 0}"]
    o += L(f"""s_nop 7
    ds_write_b128 v9, v[32:35]
    ds_write_b128 v9, v[36:39] offset:1024
    s_waitcnt lgkmcnt(0)
    s_barrier""")
    for i in range(16): o += [f"ds_read_b128 {v(16+4*i,4)}, v10 offset:{1024*i}"] + (["s_waitcnt lgkmcnt(8)"] if i == 11 else [])
    o += L(f"""v_and_b32 v11, 15, v0
    v_lshlrev_b32 v13, 12, v11
    v_lshl_add_u32 v13, v12, 4, v13
    s_lshl_b32 s36, s37, 13
    s_lshl_b32 s39, s33, 9
    s_add_u32 s36, s36, s39""")
    for w in range(1, 8): o += [f"s_waitcnt lgkmcnt({14-2*w})"] + [f"v_add_f32 {v(16+i)}, {v(16+i)}, {v(16+8*w+i)}" for i in range(8)]
    o += rndn(16, 8, 24) + silu(16, 4, 24) + rndn(16, 4, 24)
    o += [f"v_mul_f32 {v(16+i)}, {v(16+i)}, {v(20+i)}" for i in range(4)] + pack(14, 16, 2) + ["s_nop 1"]
    o += [f"v_mfma_f32_16x16x16_bf16 {v(16+4*i,4)}, {a(32+2*i,2)}, v[14:15], 0" for i in range(8)]
    o += ["v_cmp_gt_u32 vcc, 2, v11", "s_and_saveexec_b64 s[54:55], vcc", "s_nop 5"]
    o += [f"buffer_store_dwordx4 {v(16+4*i,4)}, v13, s[48:51], s36 offen offset:{64*i}" for i in range(8)]
    o += [f"{name}_fin:"] + st.end() + [f"{name}_end:", "s_endpgm"]
    return o, dict(grid=256, block=512, lds=LR+16384, vgpr=120+48, accum=120)

def k_fin(name, st, opt):
    o = L(f"""s_cmp_ge_u32 s2, 64
    s_cbranch_scc1 {name}_end""") + st.start() + L(f"""
    s_load_dwordx2 s[4:5], s[0:1], {KA_WS}
    s_load_dwordx2 s[12:13], s[0:1], {KA_OUT}
    v_and_b32 v1, 7, v0
    v_lshrrev_b32 v2, 3, v0
    v_mul_u32_u24 v2, {7*8192}, v2
    v_lshl_add_u32 v2, v1, 4, v2
    s_lshl_b32 s3, s2, 7
    s_lshr_b32 s30, s2, 5
    s_lshl_b32 s30, s30, 4
    s_add_u32 s30, s30, {WS_SEL}
    s_waitcnt lgkmcnt(0)
    s_load_dwordx4 s[36:39], s[4:5], s30""")
    o += srd(8, 4, WS_YP, 224 * 8192) + srd(12, 12, 0, 4 << 20) + srd(16, 4, WS_X2, 4 << 20) + srd(20, 4, WS_MODF + 2048, 6144)
    for i in range(7): o += [f"buffer_load_dwordx4 {v(8+4*i,4)}, v2, s[8:11], s3 offen", "s_add_u32 s3, s3, 8192"]
    o += L(f"""s_and_b32 s32, s2, 31
    s_lshl_b32 s32, s32, 6
    s_add_u32 s35, s32, 4096
    v_lshlrev_b32 v3, 3, v1
    buffer_load_dwordx2 v[38:39], v3, s[20:23], s32 offen
    buffer_load_dwordx2 v[40:41], v3, s[20:23], s32 offen offset:2048
    buffer_load_dwordx2 v[42:43], v3, s[20:23], s35 offen
    s_waitcnt lgkmcnt(0)
    s_and_b32 s33, s36, 2047
    s_sub_u32 s33, 2047, s33
    s_lshl_b32 s33, s33, 11
    s_add_u32 s33, s33, s32
    buffer_load_dwordx2 v[36:37], v3, s[16:19], s33 offen
    s_and_b32 s31, s36, 0xfffff800
    s_ashr_i32 s34, s31, 31
    s_not_b32 s34, s34
    s_or_b32 s34, s34, 0x80000000
    s_xor_b32 s31, s31, s34
    v_mov_b32 v4, s31""") + rnd1(4) + L(f"""
    v_mul_f32 v4, {f2u(-math.log2(math.e))}, v4
    v_exp_f32 v4, v4
    s_nop 0
    v_add_f32 v4, 1.0, v4
    v_rcp_f32 v4, v4
    s_nop 0""") + rnd1(4)
    for i in range(1, 7): o += [f"s_waitcnt vmcnt({10-i})"] + [f"v_add_f32 {v(8+e)}, {v(8+e)}, {v(8+4*i+e)}" for e in range(4)]
    o += allreduce([8, 9, 10, 11], [12, 13, 14, 15], lo=8)
    o += L(f"""v_lshrrev_b32 v5, 6, v0
    v_lshlrev_b32 v5, 7, v5
    v_lshl_add_u32 v5, v1, 4, v5
    ds_write_b128 v5, v[8:11]
    v_lshlrev_b32 v5, 4, v1
    s_waitcnt vmcnt(0)""")
    o += unpack(16, 36, 2) + unpack(24, 38, 2) + unpack(28, 40, 2) + unpack(32, 42, 2)
    o += [f"v_subrev_f32 {v(20+e)}, s37, {v(16+e)}" for e in range(4)] + [f"v_mul_f32 {v(20+e)}, s38, {v(20+e)}" for e in range(4)]
    o += [f"v_fma_f32 {v(20+e)}, {v(20+e)}, {v(28+e)}, {v(24+e)}" for e in range(4)] + rndn(20, 4, 12)
    o += L(f"""s_waitcnt lgkmcnt(0)
    s_barrier
    v_cmp_gt_u32 vcc, 8, v0
    s_and_saveexec_b64 s[40:41], vcc
    s_cbranch_execz {name}_fin""")
    o += [f"ds_read_b128 {v(r,4)}, v5 offset:{128*i}" for i, r in enumerate((8, 12, 24, 28))] + ["s_waitcnt lgkmcnt(0)"]
    for r in (12, 24, 28): o += [f"v_add_f32 {v(8+e)}, {v(8+e)}, {v(r+e)}" for e in range(4)]
    o += rndn(8, 4, 12) + [f"v_mul_f32 {v(8+e)}, {v(8+e)}, v4" for e in range(4)] + rndn(8, 4, 12)
    o += [f"v_add_f32 {v(8+e)}, {v(8+e)}, {v(20+e)}" for e in range(4)] + rndn(8, 4, 12)
    o += [f"v_mul_f32 {v(8+e)}, {v(8+e)}, {v(32+e)}" for e in range(4)] + rndn(8, 4, 12)
    o += [f"v_add_f32 {v(8+e)}, {v(8+e)}, {v(16+e)}" for e in range(4)] + pack(12, 8, 2)
    o += ["buffer_store_dwordx2 v[12:13], v3, s[12:15], s33 offen", f"{name}_fin:"]
    o += st.end() + [f"{name}_end:", "s_endpgm"]
    return o, dict(grid=64, block=256, lds=512, vgpr=48)
```

```python
import sys, gen, io, contextlib
for i, o in enumerate(sys.argv[1:]):
    buf = io.StringIO()
    with contextlib.redirect_stdout(buf): bad = gen.generate(f"a{i+1}.s", **eval(f"dict({o})"))
    out = buf.getvalue()
    if bad or "ERROR" in out: print(out)
    print(f"a{i+1}.s", o)
```
